```python
import torch

def _softmax(x, axis=-1):
    return torch.softmax(x, dim=axis)

def _gelu(x):
    return torch.nn.functional.gelu(x, approximate='tanh')

def _silu(x):
    return torch.nn.functional.silu(x)

def _sigmoid(x):
    return torch.sigmoid(x)

def _layernorm(x, axis=-1, eps=1e-05):
    m = x.mean(dim=axis, keepdim=True)
    v = x.var(dim=axis, keepdim=True, unbiased=False)
    return (x - m) / torch.sqrt(v + eps)

def _scatter_add(tgt, idx, src, axis=0):
    return tgt.clone().index_add_(axis, idx, src)

def _segment_sum(src, seg, n):
    out = torch.zeros((n,) + src.shape[1:], dtype=src.dtype)
    return out.index_add_(0, seg, src)

def _pad(x, pw):
    flat = tuple((v for pair in reversed(pw) for v in pair))
    return torch.nn.functional.pad(x, flat)
kernel_name = 'adaLN_cond__compressed_kv_cla__dense_activation_relu__prompt'

def setup_inputs():

    _w = lambda a: (lambda t: t.to(torch.bfloat16) if t.is_floating_point() else t)(torch.as_tensor(a))

    def _A_setup():
        B, H, Sq, Sk, D, M = (1, 32, 2048, 2048, 128, 512)
        Dc = 4 * D
        return {'x': _w((lambda *s: torch.randn(*s, dtype=torch.bfloat16) * 0.05)(B, Sq, M)), 'c_kv': _w((lambda *s: torch.randn(*s, dtype=torch.bfloat16) * 1.6)(B, Sk, Dc)), 'w_q': _w((lambda *s: torch.randn(*s, dtype=torch.bfloat16) * 0.8)(M, H, D) * M ** (-0.5)), 'w_uk': _w((lambda *s: torch.randn(*s, dtype=torch.bfloat16) * 0.8)(Dc, H, D) * Dc ** (-0.5)), 'w_uv': _w((lambda *s: torch.randn(*s, dtype=torch.bfloat16) * 1.6)(Dc, H, D) * Dc ** (-0.5)), 'w_o': _w((lambda *s: torch.randn(*s, dtype=torch.bfloat16) * 1.6)(H, D, M) * (H * D) ** (-0.5))}
    _A_in = _A_setup()

    def _B_setup():
        B, S, D, Dff = (1, 2048, 512, 1792)
        return {'x': _w((lambda *s: torch.randn(*s, dtype=torch.bfloat16) * 0.05)(B, S, D)), 'w1': _w((lambda *s: torch.randn(*s, dtype=torch.bfloat16) * 0.05)(D, Dff)), 'w2': _w((lambda *s: torch.randn(*s, dtype=torch.bfloat16) * 0.05)(Dff, D))}
    _B_in = _B_setup()
    return {'A_x': _A_in['x'], 'A_c_kv': _A_in['c_kv'], 'A_w_q': _A_in['w_q'], 'A_w_uk': _A_in['w_uk'], 'A_w_uv': _A_in['w_uv'], 'A_w_o': _A_in['w_o'], 'B_x': _B_in['x'], 'B_w1': _B_in['w1'], 'B_w2': _B_in['w2'], 'c': _w((lambda *s: torch.randn(*s, dtype=torch.bfloat16) * 0.1)(1, 512) * 8.0), 'w_mod': _w((lambda *s: torch.randn(*s, dtype=torch.bfloat16) * 0.1)(512, 6 * 512) * 512 ** (-0.5) * 8.0)}

def reference(A_x, A_c_kv, A_w_q, A_w_uk, A_w_uv, A_w_o, B_x, B_w1, B_w2, c, w_mod):

    def _A_ref(x, c_kv, w_q, w_uk, w_uv, w_o):
        B, Sq, M = (x.shape[0], x.shape[1], x.shape[2])
        Sk = c_kv.shape[1]
        H, D = (w_q.shape[1], w_q.shape[2])
        q = torch.einsum('bqm,mhd->bhqd', x, w_q)
        k = torch.einsum('bkc,chd->bhkd', c_kv, w_uk)
        v = torch.einsum('bkc,chd->bhkd', c_kv, w_uv)
        scores = torch.einsum('bhqd,bhkd->bhqk', q, k) * D ** (-0.5)
        off = Sk - Sq
        qi = torch.arange(Sq)[:, None]
        kj = torch.arange(Sk)[None, :]
        cmask = kj <= qi + off
        scores = torch.where(cmask[None, None], scores, -1000000000.0)
        p = _softmax(scores, axis=-1)
        ctx = torch.einsum('bhqk,bhkd->bhqd', p, v)
        return torch.einsum('bhqd,hdm->bqm', ctx, w_o)

    def _B_ref(x, w1, w2):
        h = torch.einsum('bsd,df->bsf', x, w1)
        zero = torch.zeros_like(h)
        h = torch.maximum(h, zero)
        return torch.einsum('bsf,fd->bsd', h, w2)
    x = A_x
    mod = (_silu(c) @ w_mod).reshape(c.shape[0], 6, 1, -1)
    sa, ca, ga, sb, cb, gb = (mod[:, 0].clone(), mod[:, 1].clone(), mod[:, 2].clone(), mod[:, 3].clone(), mod[:, 4].clone(), mod[:, 5].clone())
    h = _layernorm(x, axis=-1) * (1 + ca) + sa
    x = x + ga * _A_ref(h, A_c_kv, A_w_q, A_w_uk, A_w_uv, A_w_o)
    h = _layernorm(x, axis=-1) * (1 + cb) + sb
    x = x + gb * _B_ref(h, B_w1, B_w2)
    return x
```

```python
import re

TRANS = ("v_exp_f32", "v_log_f32", "v_rcp_f32", "v_rsq_f32", "v_sqrt_f32", "v_sin_f32", "v_cos_f32")

_reg_re = re.compile(r"\b([vsa])(\d+)\b|\b([vsa])\[(\d+):(\d+)\]|\b(vcc|exec|m0|scc)\b")


def regs_of(tok):
    out = set()
    for m in _reg_re.finditer(tok):
        if m.group(1):
            out.add((m.group(1), int(m.group(2))))
        elif m.group(3):
            for i in range(int(m.group(4)), int(m.group(5)) + 1):
                out.add((m.group(3), i))
        else:
            out.add((m.group(6), 0))
    return out


def split_ops(s):
    ops, depth, cur = [], 0, ""
    for ch in s:
        if ch == "[":
            depth += 1
        elif ch == "]":
            depth -= 1
        if ch == "," and depth == 0:
            ops.append(cur.strip())
            cur = ""
        else:
            cur += ch
    if cur.strip():
        ops.append(cur.strip())
    return ops


class Ins:
    __slots__ = ("text", "op", "wr", "rd", "kind", "passes", "srcc", "srcab", "ws", "store_data")

    def __init__(self, text):
        self.text = text
        t = text.split(";")[0].strip()
        parts = t.split(None, 1)
        self.op = parts[0]
        rest = parts[1] if len(parts) > 1 else ""
        ops = split_ops(rest)
        self.wr, self.rd = set(), set()
        self.kind = "other"
        self.passes = 0
        self.srcc = set()
        self.srcab = set()
        self.store_data = set()
        self.ws = 1
        op = self.op
        if op == "s_nop":
            self.ws = int(ops[0], 0) + 1
            self.kind = "nop"
        elif op.startswith("v_mfma"):
            self.kind = "mfma"
            self.passes = 8 if "32x32" in op else 4
            self.wr = regs_of(ops[0])
            self.srcab = regs_of(ops[1]) | regs_of(ops[2])
            self.srcc = regs_of(ops[3])
            self.rd = self.srcab | self.srcc
        elif op.startswith("v_cmp"):
            self.kind = "valu"
            self.wr = regs_of(ops[0])
            for o in ops[1:]:
                self.rd |= regs_of(o)
        elif op.startswith("v_readfirstlane") or op.startswith("v_readlane"):
            self.kind = "valu"
            self.wr = regs_of(ops[0])
            for o in ops[1:]:
                self.rd |= regs_of(o)
        elif op.startswith("v_permlane"):
            self.kind = "valu"
            self.wr = regs_of(ops[0]) | regs_of(ops[1])
            self.rd = set(self.wr)
        elif op.startswith("v_"):
            self.kind = "valu"
            self.wr = regs_of(ops[0])
            i = 1
            if op.startswith(("v_add_co", "v_sub_co", "v_addc_co", "v_subb_co")):
                self.wr |= regs_of(ops[1])
                i = 2
            for o in ops[i:]:
                self.rd |= regs_of(o)
            if op.startswith(("v_fmac", "v_pk_fmac")):
                self.rd |= regs_of(ops[0])
        elif op.startswith(("buffer_load", "global_load", "ds_read", "ds_bpermute", "ds_swizzle", "ds_permute")):
            self.kind = "mem"
            self.wr = regs_of(ops[0])
            for o in ops[1:]:
                self.rd |= regs_of(o)
        elif op.startswith(("buffer_store", "global_store")):
            self.kind = "mem"
            for o in ops:
                self.rd |= regs_of(o)
            di = 0 if op.startswith("buffer_store") else 1
            if op.endswith(("x3", "x4")):
                self.store_data = regs_of(ops[di])
        elif op.startswith("ds_write"):
            self.kind = "mem"
            for o in ops:
                self.rd |= regs_of(o)
        elif op.startswith("s_"):
            self.kind = "salu"
            if ops and not op.startswith(("s_cmp", "s_cbranch", "s_branch", "s_waitcnt", "s_barrier", "s_endpgm", "s_setprio")):
                self.wr = regs_of(ops[0])
                for o in ops[1:]:
                    self.rd |= regs_of(o)
            else:
                for o in ops:
                    self.rd |= regs_of(o)


def need_ws(p, c):
    n = 0
    vw = {r for r in p.wr if r[0] in ("v", "a")}
    sw = {r for r in p.wr if r[0] in ("s", "vcc")}
    if p.kind == "valu":
        if c.kind == "mfma" and (vw & c.rd):
            n = max(n, 2)
        if c.kind == "valu":
            if sw & c.rd:
                n = max(n, 4 if c.op.startswith(("v_readlane", "v_writelane")) else 2)
            if c.op.startswith(("v_readfirstlane", "v_readlane")) and (vw & c.rd):
                n = max(n, 1)
            if c.op.startswith("v_permlane") and (vw & c.rd):
                n = max(n, 2)
            if "dpp" in c.text and (vw & c.rd):
                n = max(n, 2)
            if re.sub(r"_e(32|64)$", "", p.op) in TRANS and (vw & (c.rd | c.wr)):
                n = max(n, 1)
        if c.kind == "mem" and (sw & c.rd):
            n = max(n, 5)
        if c.kind == "salu" and (sw & c.rd):
            n = max(n, 1)
    if p.kind == "mfma":
        big = p.passes == 8
        if c.kind == "mfma":
            if p.wr & c.srcab:
                n = max(n, 12 if big else 8)
            if p.wr & c.srcc:
                if not (p.wr == c.srcc and p.passes == c.passes):
                    n = max(n, 10 if big else 6)
            if (p.wr & c.wr) and not (p.wr == c.wr and p.passes == c.passes):
                n = max(n, 10 if big else 6)
        elif c.kind in ("valu", "mem"):
            if p.wr & (c.rd | c.wr):
                n = max(n, 12 if big else 8)
            if c.kind == "valu" and (p.srcc & c.wr):
                n = max(n, 7 if big else 3)
    if p.store_data and (p.store_data & c.wr):
        n = max(n, 2 if c.kind == "valu" else 1)
    return n


class Asm:
    def __init__(self):
        self.out = []
        self.hist = []
        self.uid = 0

    def raw(self, text):
        self.out.append(text)

    def label(self, name):
        self.flush()
        self.out.append(f"{name}:")

    def newlabel(self, base="L"):
        self.uid += 1
        return f".{base}_{self.uid}"

    def flush(self):
        need = 0
        dist = 0
        for p in reversed(self.hist):
            if p.kind == "mfma":
                need = max(need, (12 if p.passes == 8 else 8) - dist)
            elif p.kind == "valu":
                need = max(need, 5 - dist)
            elif p.store_data:
                need = max(need, 2 - dist)
            dist += p.ws
            if dist > 24:
                break
        while need > 0:
            k = min(need, 16)
            self.out.append(f"    s_nop {k-1}")
            need -= k
        self.hist = []

    def __call__(self, text):
        for line in text.strip().split("\n"):
            line = line.strip()
            if not line or line.startswith(";"):
                continue
            ins = Ins(line)
            if ins.op.startswith(("s_cbranch", "s_branch")):
                self.flush()
            need = 0
            dist = 0
            for p in reversed(self.hist):
                need = max(need, need_ws(p, ins) - dist)
                dist += p.ws
                if dist > 24:
                    break
            while need > 0:
                k = min(need, 16)
                self.out.append(f"    s_nop {k-1}")
                self.hist.append(Ins(f"s_nop {k-1}"))
                need -= k
            self.out.append("    " + line)
            self.hist.append(ins)
            if len(self.hist) > 64:
                self.hist = self.hist[-40:]
            if ins.op.startswith(("s_cbranch", "s_branch")):
                pass

    def text(self):
        return "\n".join(self.out) + "\n"


def vr(b, n=1):
    return f"v{b}" if n == 1 else f"v[{b}:{b+n-1}]"


def sr(b, n=1):
    return f"s{b}" if n == 1 else f"s[{b}:{b+n-1}]"
```

```python
import sys, os
sys.path.insert(0, os.path.dirname(os.path.abspath(__file__)))
from asmlib import Asm, vr, sr

NAME = "adaLN_cond__compressed_kv_cla__dense_activation_relu__prompt"
MB = 1 << 20
WS_MOD = 0
WS_H = 1 * MB
WS_Q = 4 * MB
WS_K = 20 * MB
WS_V = 36 * MB
WS_CTX = 52 * MB
WS_X1 = 68 * MB
WS_H2 = 70 * MB
WS_F = 72 * MB

KA_X, KA_CKV, KA_WQ, KA_WUK, KA_WUV, KA_WO, KA_BX, KA_W1, KA_W2, KA_C, KA_WMOD, KA_OUT, KA_DBG, KA_WS = [8 * i for i in range(14)]

kernels = []


def begin(a, name):
    a.raw(f".globl {name}")
    a.raw(".p2align 8")
    a.raw(f".type {name},@function")
    a.raw(f"{name}:")
    a.hist = []


def srd(a, d, p, off, size):
    if off:
        a(f"s_add_u32 s{d}, s{p}, {hex(off & 0xffffffff)}")
        a(f"s_addc_u32 s{d+1}, s{p+1}, {hex(off >> 32)}")
        a(f"s_and_b32 s{d+1}, s{d+1}, 0xffff")
    else:
        a(f"s_mov_b32 s{d}, s{p}")
        a(f"s_and_b32 s{d+1}, s{p+1}, 0xffff")
    a(f"s_mov_b32 s{d+2}, {hex(size)}")
    a(f"s_mov_b32 s{d+3}, 0x20000")


def round_bf16(a, dst, src, tmp=None):
    a(f"v_cvt_pk_bf16_f32 v{dst}, v{src}, v{src}")
    a(f"v_lshlrev_b32 v{dst}, 16, v{dst}")


def unpack2(a, lo, hi, src):
    a(f"v_lshlrev_b32 v{lo}, 16, v{src}")
    a(f"v_and_b32 v{hi}, 0xffff0000, v{src}")


def allreduce_sum(a, v, t):
    for pat in (0x041F, 0x081F, 0x101F, 0x201F, 0x401F):
        a(f"ds_swizzle_b32 v{t}, v{v} offset:{hex(pat)}")
        a("s_waitcnt lgkmcnt(0)")
        a(f"v_add_f32 v{v}, v{v}, v{t}")
    a(f"v_mov_b32 v{t}, v{v}")
    a(f"v_permlane32_swap_b32 v{v}, v{t}")
    a(f"v_add_f32 v{v}, v{v}, v{t}")


def k_mod(a):
    name = "mod_kernel"
    begin(a, name)
    a("s_cmp_ge_u32 s2, 48")
    a(f"s_cbranch_scc1 .L{name}_end")
    a(f"s_load_dwordx2 s[4:5], s[0:1], {KA_C}")
    a(f"s_load_dwordx2 s[6:7], s[0:1], {KA_WMOD}")
    a(f"s_load_dwordx2 s[8:9], s[0:1], {KA_WS}")
    a("s_waitcnt lgkmcnt(0)")
    srd(a, 12, 4, 0, 1024)
    srd(a, 16, 6, 0, 512 * 3072 * 2)
    srd(a, 20, 8, WS_MOD, 3072 * 4)
    a("v_and_b32 v1, 7, v0")
    a("v_lshrrev_b32 v2, 3, v0")
    a("v_lshlrev_b32 v3, 5, v2")
    a("buffer_load_dwordx4 v[8:11], v3, s[12:15], 0 offen")
    a("buffer_load_dwordx4 v[12:15], v3, s[12:15], 0 offen offset:16")
    a("s_lshl_b32 s24, s2, 7")
    a("v_mul_u32_u24 v4, 16*6144, v2")
    a("v_lshlrev_b32 v5, 4, v1")
    a("v_add_u32 v4, v4, v5")
    a("v_add_u32 v4, s24, v4")
    for r in range(16):
        a(f"buffer_load_dwordx4 v[{64+4*r}:{67+4*r}], v4, s[16:19], 0 offen")
        if r < 15:
            a(f"v_add_u32 v4, 6144, v4")
    a("s_waitcnt vmcnt(16)")
    for i in range(8):
        unpack2(a, 16 + 2 * i, 17 + 2 * i, 8 + i)
    for i in range(16):
        a(f"v_mul_f32 v32, 0xbfb8aa3b, v{16+i}")
        a("v_exp_f32 v32, v32")
        a("v_add_f32 v32, 1.0, v32")
        a("v_rcp_f32 v32, v32")
        a(f"v_mul_f32 v{16+i}, v{16+i}, v32")
        round_bf16(a, 16 + i, 16 + i)
    for j in range(8):
        a(f"v_mov_b32 v{40+j}, 0")
    a("s_waitcnt vmcnt(0)")
    for r in range(16):
        for q in range(4):
            unpack2(a, 32, 33, 64 + 4 * r + q)
            a(f"v_fmac_f32 v{40+2*q}, v32, v{16+r}")
            a(f"v_fmac_f32 v{41+2*q}, v33, v{16+r}")
    a("v_lshlrev_b32 v5, 8, v2")
    a("v_lshlrev_b32 v6, 5, v1")
    a("v_add_u32 v5, v5, v6")
    a("ds_write_b128 v5, v[40:43]")
    a("ds_write_b128 v5, v[44:47] offset:16")
    a("s_waitcnt lgkmcnt(0)")
    a("s_barrier")
    a("v_cmp_gt_u32 vcc, 64, v0")
    a("s_and_saveexec_b64 s[26:27], vcc")
    a(f"s_cbranch_execz .L{name}_end")
    a("v_lshlrev_b32 v5, 2, v0")
    for g in range(32):
        a(f"ds_read_b32 v{64+g}, v5 offset:{g*256}")
    a("s_waitcnt lgkmcnt(0)")
    for g in range(1, 32):
        a(f"v_add_f32 v64, v64, v{64+g}")
    round_bf16(a, 64, 64)
    a("s_lshl_b32 s24, s2, 8")
    a("v_add_u32 v5, s24, v5")
    a("buffer_store_dword v64, v5, s[20:23], 0 offen")
    a.label(f".L{name}_end")
    a("s_endpgm")
    kernels.append((name, (48, 1, 1), (256, 1, 1), 8192, 128, 32))


def k_ln(a, name, src_is_ws, src_off, dst_off, sh_idx, sc_idx):
    begin(a, name)
    a("s_cmp_ge_u32 s2, 512")
    a(f"s_cbranch_scc1 .L{name}_end")
    a(f"s_load_dwordx2 s[4:5], s[0:1], {KA_X}")
    a(f"s_load_dwordx2 s[8:9], s[0:1], {KA_WS}")
    a("s_waitcnt lgkmcnt(0)")
    if src_is_ws:
        srd(a, 12, 8, src_off, 2 * MB)
    else:
        srd(a, 12, 4, 0, 2 * MB)
    srd(a, 16, 8, WS_MOD, 3072 * 4)
    srd(a, 20, 8, dst_off, 2 * MB)
    a("v_and_b32 v1, 63, v0")
    a("v_lshrrev_b32 v2, 6, v0")
    a("s_lshl_b32 s24, s2, 2")
    a("v_add_u32 v2, s24, v2")
    a("v_lshlrev_b32 v3, 10, v2")
    a("v_lshlrev_b32 v4, 4, v1")
    a("v_add_u32 v3, v3, v4")
    a("buffer_load_dwordx4 v[8:11], v3, s[12:15], 0 offen")
    a("v_lshlrev_b32 v5, 5, v1")
    a(f"v_add_u32 v6, {sc_idx*2048}, v5")
    a("buffer_load_dwordx4 v[40:43], v6, s[16:19], 0 offen")
    a("buffer_load_dwordx4 v[44:47], v6, s[16:19], 0 offen offset:16")
    a(f"v_add_u32 v6, {sh_idx*2048}, v5")
    a("buffer_load_dwordx4 v[48:51], v6, s[16:19], 0 offen")
    a("buffer_load_dwordx4 v[52:55], v6, s[16:19], 0 offen offset:16")
    a("s_waitcnt vmcnt(4)")
    for i in range(4):
        unpack2(a, 16 + 2 * i, 17 + 2 * i, 8 + i)
    a("v_add_f32 v24, v16, v17")
    for i in range(2, 8):
        a(f"v_add_f32 v24, v24, v{16+i}")
    allreduce_sum(a, 24, 25)
    a("v_mul_f32 v24, 0x3b000000, v24")
    a("v_mov_b32 v26, 0")
    for i in range(8):
        a(f"v_sub_f32 v27, v{16+i}, v24")
        a("v_fmac_f32 v26, v27, v27")
    allreduce_sum(a, 26, 25)
    a("v_mul_f32 v26, 0x3b000000, v26")
    round_bf16(a, 24, 24)
    round_bf16(a, 26, 26)
    a("v_add_f32 v26, 0x3727c5ac, v26")
    round_bf16(a, 26, 26)
    a("v_sqrt_f32 v26, v26")
    round_bf16(a, 26, 26)
    a("v_rcp_f32 v26, v26")
    a("s_waitcnt vmcnt(0)")
    for i in range(8):
        a(f"v_sub_f32 v{16+i}, v{16+i}, v24")
        round_bf16(a, 16 + i, 16 + i)
        a(f"v_mul_f32 v{16+i}, v{16+i}, v26")
        round_bf16(a, 16 + i, 16 + i)
        a(f"v_add_f32 v{40+i}, 1.0, v{40+i}")
        round_bf16(a, 40 + i, 40 + i)
        a(f"v_mul_f32 v{16+i}, v{16+i}, v{40+i}")
        round_bf16(a, 16 + i, 16 + i)
        a(f"v_add_f32 v{16+i}, v{16+i}, v{48+i}")
    for i in range(4):
        a(f"v_cvt_pk_bf16_f32 v{8+i}, v{16+2*i}, v{17+2*i}")
    a("buffer_store_dwordx4 v[8:11], v3, s[20:23], 0 offen")
    a.label(f".L{name}_end")
    a("s_endpgm")
    kernels.append((name, (512, 1, 1), (256, 1, 1), 0, 64, 32))


ASTR = 144
def gemm_body(a, name, K, lda, ldb, ldc, BM, BN, epi):
    WM, WN = BM // 64, BN // 64
    BSTR = BN * 2 + 64
    ABYTES = BM * ASTR
    BBYTES = 64 * BSTR
    BUF = ABYTES + BBYTES
    NA = BM * 128 // 4096
    NB = 64 * BN * 2 // 4096
    ACC = 16
    nacc = WM * WN * 16
    FA = ACC + nacc
    FB = FA + 2 * WM * 4
    ST = FB + 2 * WN * 4
    top = ST + 4 * (NA + NB)
    a("v_and_b32 v1, 63, v0")
    a("v_lshrrev_b32 v2, 6, v0")
    a("v_lshrrev_b32 v3, 3, v0")
    a("v_and_b32 v4, 7, v0")
    a(f"v_mul_u32_u24 v5, {lda*2}, v3")
    a("v_lshlrev_b32 v6, 4, v4")
    a("v_add_u32 v5, v5, v6")
    a("v_add_u32 v5, s24, v5")
    a(f"v_mul_u32_u24 v7, {ASTR}, v3")
    a("v_add_u32 v7, v7, v6")
    CB = BN // 8
    RB = 256 // CB
    sh = CB.bit_length() - 1
    a(f"v_lshrrev_b32 v3, {sh}, v0")
    a(f"v_and_b32 v4, {CB-1}, v0")
    a(f"v_mul_u32_u24 v8, {ldb*2}, v3")
    a("v_lshlrev_b32 v6, 4, v4")
    a("v_add_u32 v8, v8, v6")
    a("v_add_u32 v8, s25, v8")
    a(f"v_mul_u32_u24 v9, {BSTR}, v3")
    a("v_add_u32 v9, v9, v6")
    a(f"v_add_u32 v9, {ABYTES}, v9")
    a("v_lshrrev_b32 v3, 1, v2")
    a("v_and_b32 v4, 1, v2")
    a("v_and_b32 v6, 31, v1")
    a(f"v_mul_u32_u24 v10, {32*WM}, v3")
    a("v_add_u32 v10, v10, v6")
    a(f"v_mul_u32_u24 v10, {ASTR}, v10")
    a("v_lshrrev_b32 v11, 5, v1")
    a("v_lshlrev_b32 v12, 4, v11")
    a("v_add_u32 v10, v10, v12")
    a("v_and_b32 v12, 15, v1")
    a("v_lshrrev_b32 v13, 2, v12")
    a("v_lshlrev_b32 v14, 3, v11")
    a("v_add_u32 v13, v13, v14")
    a(f"v_mul_u32_u24 v13, {BSTR}, v13")
    a("v_lshrrev_b32 v14, 4, v1")
    a("v_and_b32 v14, 1, v14")
    a("v_lshlrev_b32 v14, 4, v14")
    a("v_and_b32 v15, 3, v12")
    a("v_lshlrev_b32 v15, 2, v15")
    a("v_add_u32 v14, v14, v15")
    a(f"v_mul_u32_u24 v15, {32*WN}, v4")
    a("v_add_u32 v14, v14, v15")
    a("v_lshlrev_b32 v14, 1, v14")
    a("v_add_u32 v13, v13, v14")
    a(f"v_add_u32 v13, {ABYTES}, v13")
    a(f"v_add_u32 v11, {BUF}, v10")
    a(f"v_add_u32 v14, {BUF}, v13")
    a(f"v_add_u32 v12, {BUF}, v7")
    a(f"v_add_u32 v15, {BUF}, v9")
    a("s_mov_b32 s28, 0")
    a("s_mov_b32 s29, 0")

    def loads():
        for j in range(NA):
            off = j * 32 * lda * 2
            if off < 4096:
                a(f"buffer_load_dwordx4 v[{ST+4*j}:{ST+4*j+3}], v5, s[12:15], s28 offen offset:{off}")
            else:
                a(f"s_add_u32 s31, s28, {off}")
                a(f"buffer_load_dwordx4 v[{ST+4*j}:{ST+4*j+3}], v5, s[12:15], s31 offen")
        for j in range(NB):
            off = j * RB * ldb * 2
            r = ST + 4 * (NA + j)
            if off < 4096:
                a(f"buffer_load_dwordx4 v[{r}:{r+3}], v8, s[16:19], s29 offen offset:{off}")
            else:
                a(f"s_add_u32 s31, s29, {off}")
                a(f"buffer_load_dwordx4 v[{r}:{r+3}], v8, s[16:19], s31 offen")
        a("s_add_u32 s28, s28, 128")
        a(f"s_add_u32 s29, s29, {64*ldb*2}")

    def writes(buf):
        va, vb = (7, 9) if buf == 0 else (12, 15)
        for j in range(NA):
            a(f"ds_write_b128 v{va}, v[{ST+4*j}:{ST+4*j+3}] offset:{j*32*ASTR}")
        for j in range(NB):
            r = ST + 4 * (NA + j)
            a(f"ds_write_b128 v{vb}, v[{r}:{r+3}] offset:{j*RB*BSTR}")

    def frag_reads(buf, s):
        va, vb = (10, 13) if buf == 0 else (11, 14)
        st = s & 1
        for mt in range(WM):
            r = FA + (st * WM + mt) * 4
            a(f"ds_read_b128 v[{r}:{r+3}], v{va} offset:{mt*32*ASTR + s*32}")
        for nt in range(WN):
            r = FB + (st * WN + nt) * 4
            for q in range(2):
                a(f"ds_read_b64_tr_b16 v[{r+2*q}:{r+2*q+1}], v{vb} offset:{(16*s+4*q)*BSTR + nt*64}")

    nrd = WM + 2 * WN

    def compute(buf):
        frag_reads(buf, 0)
        for s in range(4):
            if s < 3:
                frag_reads(buf, s + 1)
                a(f"s_waitcnt lgkmcnt({nrd})")
            else:
                a("s_waitcnt lgkmcnt(0)")
            st = s & 1
            for mt in range(WM):
                for nt in range(WN):
                    c = ACC + (mt * WN + nt) * 16
                    fa = FA + (st * WM + mt) * 4
                    fb = FB + (st * WN + nt) * 4
                    a(f"v_mfma_f32_32x32x16_bf16 v[{c}:{c+15}], v[{fb}:{fb+3}], v[{fa}:{fa+3}], v[{c}:{c+15}]")

    for i in range(nacc):
        a(f"v_mov_b32 v{ACC+i}, 0")
    loads()
    a("s_waitcnt vmcnt(0)")
    writes(0)
    loads()
    a("s_waitcnt lgkmcnt(0)")
    a("s_barrier")
    KT = K // 64
    assert KT % 2 == 0
    a(f"s_mov_b32 s30, {KT//2}")
    a.label(f".L{name}_loop")
    for buf in range(2):
        compute(buf)
        a("s_waitcnt vmcnt(0)")
        writes(buf ^ 1)
        loads()
        a("s_waitcnt lgkmcnt(0)")
        a("s_barrier")
    a("s_sub_u32 s30, s30, 1")
    a("s_cmp_lg_u32 s30, 0")
    a.flush()
    a(f"s_cbranch_scc1 .L{name}_loop")
    a("s_waitcnt vmcnt(0)")
    a(f"v_mul_u32_u24 v5, {32*WM}, v3")
    a("v_add_u32 v5, v5, v6")
    a(f"v_mul_u32_u24 v7, {32*WN}, v4")
    a("v_lshrrev_b32 v8, 5, v1")
    a("v_lshlrev_b32 v8, 2, v8")
    a("v_add_u32 v7, v7, v8")
    epi(a, ACC, WM, WN, top)
    return top, 2 * BUF


def epi_store(ldc, relu=False):
    def f(a, ACC, WM, WN, top):
        a(f"v_mul_u32_u24 v9, {ldc*2}, v5")
        a("v_lshlrev_b32 v10, 1, v7")
        a("v_add_u32 v9, v9, v10")
        a("v_add_u32 v9, s26, v9")
        for mt in range(WM):
            for nt in range(WN):
                c = ACC + (mt * WN + nt) * 16
                for j in range(4):
                    r = c + 4 * j
                    if relu:
                        for q in range(4):
                            a(f"v_max_f32 v{r+q}, 0, v{r+q}")
                    a(f"v_cvt_pk_bf16_f32 v{r}, v{r}, v{r+1}")
                    a(f"v_cvt_pk_bf16_f32 v{r+1}, v{r+2}, v{r+3}")
                    off = mt * 32 * ldc * 2 + (nt * 32 + 8 * j) * 2
                    a(f"s_mov_b32 s31, {off}")
                    a(f"buffer_store_dwordx2 v[{r}:{r+1}], v9, s[20:23], s31 offen")
    return f


def epi_resid(gate_idx):
    def f(a, ACC, WM, WN, top):
        ldc = 512
        a(f"v_mul_u32_u24 v9, {ldc*2}, v5")
        a("v_lshlrev_b32 v10, 1, v7")
        a("v_add_u32 v9, v9, v10")
        a("v_add_u32 v9, s26, v9")
        a("v_add_u32 v11, s27, v7")
        a("v_lshlrev_b32 v11, 2, v11")
        a(f"v_add_u32 v11, {gate_idx*2048}, v11")
        T = top
        for mt in range(WM):
            for nt in range(WN):
                c = ACC + (mt * WN + nt) * 16
                for j in range(4):
                    r = c + 4 * j
                    off = mt * 32 * ldc * 2 + (nt * 32 + 8 * j) * 2
                    a(f"s_mov_b32 s31, {off}")
                    a(f"buffer_load_dwordx2 v[{T}:{T+1}], v9, s[32:35], s31 offen")
                    a(f"buffer_load_dwordx4 v[{T+4}:{T+7}], v11, s[36:39], 0 offen offset:{(nt*32+8*j)*4}")
                    for q in range(4):
                        round_bf16(a, r + q, r + q)
                    a("s_waitcnt vmcnt(0)")
                    unpack2(a, T + 8, T + 9, T)
                    unpack2(a, T + 10, T + 11, T + 1)
                    for q in range(4):
                        a(f"v_mul_f32 v{r+q}, v{r+q}, v{T+4+q}")
                        round_bf16(a, r + q, r + q)
                        a(f"v_add_f32 v{r+q}, v{r+q}, v{T+8+q}")
                    a(f"v_cvt_pk_bf16_f32 v{r}, v{r}, v{r+1}")
                    a(f"v_cvt_pk_bf16_f32 v{r+1}, v{r+2}, v{r+3}")
                    a(f"buffer_store_dwordx2 v[{r}:{r+1}], v9, s[20:23], s31 offen")
    return f


def k_qkv(a):
    name = "qkv_kernel"
    begin(a, name)
    a("s_cmp_ge_u32 s2, 1536")
    a(f"s_cbranch_scc1 .L{name}_end")
    a(f"s_load_dwordx2 s[4:5], s[0:1], {KA_CKV}")
    a(f"s_load_dwordx4 s[40:43], s[0:1], {KA_WQ}")
    a(f"s_load_dwordx2 s[44:45], s[0:1], {KA_WUV}")
    a(f"s_load_dwordx2 s[8:9], s[0:1], {KA_WS}")
    a("s_waitcnt lgkmcnt(0)")
    a("s_and_b32 s46, s2, 15")
    a("s_lshr_b32 s47, s2, 4")
    a("s_lshr_b32 s48, s47, 5")
    a("s_and_b32 s47, s47, 31")
    a("s_cmp_eq_u32 s48, 0")
    a(f"s_cbranch_scc0 .L{name}_kv")
    srd(a, 12, 8, WS_H, 2 * MB)
    srd(a, 16, 40, 0, 4 * MB)
    srd(a, 20, 8, WS_Q, 16 * MB)
    a(f"s_branch .L{name}_go")
    a.label(f".L{name}_kv")
    srd(a, 12, 4, 0, 2 * MB)
    a("s_cmp_eq_u32 s48, 1")
    a(f"s_cbranch_scc0 .L{name}_v")
    srd(a, 16, 42, 0, 4 * MB)
    srd(a, 20, 8, WS_K, 16 * MB)
    a(f"s_branch .L{name}_go")
    a.label(f".L{name}_v")
    srd(a, 16, 44, 0, 4 * MB)
    srd(a, 20, 8, WS_V, 16 * MB)
    a.label(f".L{name}_go")
    a(f"s_mul_i32 s24, s46, {128*512*2}")
    a("s_lshl_b32 s25, s47, 8")
    a(f"s_mul_i32 s26, s46, {128*4096*2}")
    a("s_add_u32 s26, s26, s25")
    top, lds = gemm_body(a, name, 512, 512, 4096, 4096, 128, 128, epi_store(4096))
    a.label(f".L{name}_end")
    a("s_endpgm")
    kernels.append((name, (1536, 1, 1), (256, 1, 1), lds, top + 16, 56))


def k_ffn1(a):
    name = "ffn1_kernel"
    begin(a, name)
    a("s_cmp_ge_u32 s2, 224")
    a(f"s_cbranch_scc1 .L{name}_end")
    a(f"s_load_dwordx2 s[40:41], s[0:1], {KA_W1}")
    a(f"s_load_dwordx2 s[8:9], s[0:1], {KA_WS}")
    a("s_waitcnt lgkmcnt(0)")
    a("s_and_b32 s46, s2, 15")
    a("s_lshr_b32 s47, s2, 4")
    srd(a, 12, 8, WS_H2, 2 * MB)
    srd(a, 16, 40, 0, 512 * 1792 * 2)
    srd(a, 20, 8, WS_F, 2048 * 1792 * 2)
    a(f"s_mul_i32 s24, s46, {128*512*2}")
    a("s_lshl_b32 s25, s47, 8")
    a(f"s_mul_i32 s26, s46, {128*1792*2}")
    a("s_add_u32 s26, s26, s25")
    top, lds = gemm_body(a, name, 512, 512, 1792, 1792, 128, 128, epi_store(1792, relu=True))
    a.label(f".L{name}_end")
    a("s_endpgm")
    kernels.append((name, (224, 1, 1), (256, 1, 1), lds, top + 16, 56))


def k_resid_gemm(a, name, a_off, a_size, K, w_slot, w_size, res_is_ws, res_off, out_is_ws, out_off, gate_idx):
    begin(a, name)
    a("s_cmp_ge_u32 s2, 256")
    a(f"s_cbranch_scc1 .L{name}_end")
    a(f"s_load_dwordx2 s[40:41], s[0:1], {w_slot}")
    a(f"s_load_dwordx2 s[42:43], s[0:1], {KA_X}")
    a(f"s_load_dwordx2 s[44:45], s[0:1], {KA_OUT}")
    a(f"s_load_dwordx2 s[8:9], s[0:1], {KA_WS}")
    a("s_waitcnt lgkmcnt(0)")
    a("s_and_b32 s46, s2, 31")
    a("s_lshr_b32 s47, s2, 5")
    srd(a, 12, 8, a_off, a_size)
    srd(a, 16, 40, 0, w_size)
    if out_is_ws:
        srd(a, 20, 8, out_off, 2 * MB)
    else:
        srd(a, 20, 44, 0, 2 * MB)
    if res_is_ws:
        srd(a, 32, 8, res_off, 2 * MB)
    else:
        srd(a, 32, 42, 0, 2 * MB)
    srd(a, 36, 8, WS_MOD, 3072 * 4)
    a(f"s_mul_i32 s24, s46, {64*K*2}")
    a("s_lshl_b32 s25, s47, 7")
    a(f"s_mul_i32 s26, s46, {64*512*2}")
    a("s_add_u32 s26, s26, s25")
    a("s_lshl_b32 s27, s47, 6")
    top, lds = gemm_body(a, name, K, K, 512, 512, 64, 64, epi_resid(gate_idx))
    a.label(f".L{name}_end")
    a("s_endpgm")
    kernels.append((name, (256, 1, 1), (256, 1, 1), lds, top + 16, 56))


KSTR = 272
VSTR = 320
def k_attn(a):
    name = "attn_kernel"
    begin(a, name)
    a("s_cmp_ge_u32 s2, 512")
    a(f"s_cbranch_scc1 .L{name}_end")
    a(f"s_load_dwordx2 s[8:9], s[0:1], {KA_WS}")
    a("s_waitcnt lgkmcnt(0)")
    srd(a, 12, 8, WS_Q, 16 * MB)
    srd(a, 16, 8, WS_K, 16 * MB)
    srd(a, 20, 8, WS_V, 16 * MB)
    srd(a, 24, 8, WS_CTX, 16 * MB)
    a("s_and_b32 s28, s2, 31")
    a("s_lshr_b32 s29, s2, 5")
    a("s_sub_u32 s30, 15, s29")
    a("s_sub_u32 s31, s29, 8")
    a("s_cmp_lt_u32 s29, 8")
    a("s_cselect_b32 s29, s30, s31")
    a("s_lshl_b32 s32, s28, 8")
    a("s_lshl_b32 s33, s29, 7")
    a("s_lshl_b32 s34, s29, 1")
    a("s_add_u32 s34, s34, 2")
    QF, OA, SA, PP, KF, VF, ST, M0 = 16, 48, 112, 144, 160, 176, 192, 224
    VM, VL, VDIFF, VT0, VT1, VMN, VAL = M0, M0 + 1, M0 + 2, M0 + 3, M0 + 4, M0 + 5, M0 + 6
    KB, VB = 0, 64 * KSTR
    BUF = 64 * KSTR + 64 * VSTR
    a("v_and_b32 v1, 63, v0")
    a("v_lshrrev_b32 v2, 6, v0")
    a("v_and_b32 v3, 31, v1")
    a("v_lshrrev_b32 v4, 5, v1")
    a("v_lshlrev_b32 v5, 5, v2")
    a("v_add_u32 v5, v5, v3")
    a("v_add_u32 v5, s33, v5")
    a("v_lshlrev_b32 v6, 13, v5")
    a("v_lshlrev_b32 v7, 4, v4")
    a("v_add_u32 v6, v6, v7")
    a("v_add_u32 v6, s32, v6")
    for s in range(8):
        a(f"buffer_load_dwordx4 v[{QF+4*s}:{QF+4*s+3}], v6, s[12:15], 0 offen offset:{32*s}")
    a("v_lshrrev_b32 v7, 4, v0")
    a("v_and_b32 v8, 15, v0")
    a("v_lshlrev_b32 v9, 13, v7")
    a("v_lshlrev_b32 v10, 4, v8")
    a("v_add_u32 v9, v9, v10")
    a("v_add_u32 v9, s32, v9")
    a(f"v_mul_u32_u24 v11, {KSTR}, v7")
    a("v_add_u32 v11, v11, v10")
    a(f"v_mul_u32_u24 v12, {VSTR}, v7")
    a("v_add_u32 v12, v12, v10")
    a(f"v_add_u32 v12, {VB}, v12")
    a(f"v_mul_u32_u24 v13, {KSTR}, v3")
    a("v_lshlrev_b32 v14, 4, v4")
    a("v_add_u32 v13, v13, v14")
    a("v_and_b32 v14, 15, v1")
    a("v_lshrrev_b32 v15, 2, v14")
    a("v_lshlrev_b32 v10, 2, v4")
    a("v_add_u32 v15, v15, v10")
    a(f"v_mul_u32_u24 v15, {VSTR}, v15")
    a("v_lshrrev_b32 v10, 4, v1")
    a("v_and_b32 v10, 1, v10")
    a("v_lshlrev_b32 v10, 5, v10")
    a("v_add_u32 v15, v15, v10")
    a("v_and_b32 v10, 3, v14")
    a("v_lshlrev_b32 v10, 3, v10")
    a("v_add_u32 v15, v15, v10")
    a(f"v_add_u32 v15, {VB}, v15")
    for i in range(64):
        a(f"v_mov_b32 v{OA+i}, 0")
    a(f"v_mov_b32 v{VM}, 0xff800000")
    a(f"v_mov_b32 v{VL}, 0")
    a("s_mov_b32 s35, 0")
    a("s_mov_b32 s36, 0")
    a("v_readfirstlane_b32 s38, v2")
    a("s_lshl_b32 s38, s38, 5")
    a("s_add_u32 s38, s38, s33")
    a("s_add_u32 s37, s38, 31")
    a("s_lshr_b32 s37, s37, 6")
    a("s_mov_b32 s39, 0x3e0293ee")

    def loads():
        for j in range(4):
            a(f"s_add_u32 s40, s36, {j*16*8192}")
            a(f"buffer_load_dwordx4 v[{ST+4*j}:{ST+4*j+3}], v9, s[16:19], s40 offen")
            a(f"buffer_load_dwordx4 v[{ST+16+4*j}:{ST+16+4*j+3}], v9, s[20:23], s40 offen")
        a(f"s_add_u32 s36, s36, {64*8192}")

    def writes(bufoff):
        for j in range(4):
            a(f"ds_write_b128 v{11}, v[{ST+4*j}:{ST+4*j+3}] offset:{bufoff + j*16*KSTR}")
            a(f"ds_write_b128 v{12}, v[{ST+16+4*j}:{ST+16+4*j+3}] offset:{bufoff + j*16*VSTR}")

    def compute(bufoff, tag):
        seq = [(st, s) for st in range(2) for s in range(8)]
        def kread(idx):
            st, s = seq[idx]
            r = KF + (idx & 3) * 4
            a(f"ds_read_b128 v[{r}:{r+3}], v13 offset:{bufoff + st*32*KSTR + s*32}")
        for idx in range(3):
            kread(idx)
        for idx, (st, s) in enumerate(seq):
            if idx + 3 < 16:
                kread(idx + 3)
                a("s_waitcnt lgkmcnt(3)")
            else:
                a(f"s_waitcnt lgkmcnt({15-idx})")
            r = KF + (idx & 3) * 4
            c = SA + 16 * st
            src = f"v[{c}:{c+15}]" if s else "0"
            a(f"v_mfma_f32_32x32x16_bf16 v[{c}:{c+15}], v[{r}:{r+3}], v[{QF+4*s}:{QF+4*s+3}], {src}")
        a("s_lshl_b32 s40, s29, 1")
        a("s_cmp_lt_u32 s35, s40")
        a(f"s_cbranch_scc1 .L{name}_nomask{tag}")
        a("s_lshl_b32 s40, s35, 6")
        a(f"v_lshlrev_b32 v{VT0}, 2, v4")
        a(f"v_add_u32 v{VT0}, s40, v{VT0}")
        a(f"v_sub_u32 v{VDIFF}, v5, v{VT0}")
        a(f"v_mov_b32 v{VT1}, 0xff800000")
        for st in range(2):
            for i in range(16):
                cst = 32 * st + 8 * (i // 4) + i % 4
                a(f"v_cmp_gt_i32 vcc, {cst}, v{VDIFF}")
                a(f"v_cndmask_b32 v{SA+16*st+i}, v{SA+16*st+i}, v{VT1}, vcc")
        a.label(f".L{name}_nomask{tag}")
        a(f"v_max3_f32 v{VT0}, v{SA}, v{SA+1}, v{SA+2}")
        for i in range(3, 31, 2):
            a(f"v_max3_f32 v{VT0}, v{VT0}, v{SA+i}, v{SA+i+1}")
        a(f"v_max_f32 v{VT0}, v{VT0}, v{SA+31}")
        a(f"v_mov_b32 v{VT1}, v{VT0}")
        a(f"v_permlane32_swap_b32 v{VT0}, v{VT1}")
        a(f"v_max3_f32 v{VMN}, v{VT0}, v{VT1}, v{VM}")
        a(f"v_sub_f32 v{VAL}, v{VM}, v{VMN}")
        a(f"v_mul_f32 v{VAL}, s39, v{VAL}")
        a(f"v_exp_f32 v{VAL}, v{VAL}")
        a(f"v_mov_b32 v{VM}, v{VMN}")
        a(f"v_mul_f32 v{VT0}, s39, v{VMN}")
        for i in range(32):
            a(f"v_fma_f32 v{SA+i}, v{SA+i}, s39, -v{VT0}")
        for i in range(32):
            a(f"v_exp_f32 v{SA+i}, v{SA+i}")
        a(f"v_mul_f32 v{VL}, v{VL}, v{VAL}")
        for i in range(32):
            a(f"v_add_f32 v{VL}, v{VL}, v{SA+i}")
        for i in range(16):
            a(f"v_cvt_pk_bf16_f32 v{PP+i}, v{SA+2*i}, v{SA+2*i+1}")
        for i in range(64):
            a(f"v_mul_f32 v{OA+i}, v{OA+i}, v{VAL}")
        seq2 = [(ks, dt) for ks in range(4) for dt in range(4)]
        def vread(idx):
            ks, dt = seq2[idx]
            r = VF + (idx & 3) * 4
            for q in range(2):
                a(f"ds_read_b64_tr_b16 v[{r+2*q}:{r+2*q+1}], v15 offset:{bufoff + (16*ks+8*q)*VSTR + dt*64}")
        for idx in range(3):
            vread(idx)
        for idx, (ks, dt) in enumerate(seq2):
            if idx + 3 < 16:
                vread(idx + 3)
                a("s_waitcnt lgkmcnt(6)")
            else:
                a(f"s_waitcnt lgkmcnt({2*(15-idx)})")
            r = VF + (idx & 3) * 4
            c = OA + 16 * dt
            a(f"v_mfma_f32_32x32x16_bf16 v[{c}:{c+15}], v[{r}:{r+3}], v[{PP+4*ks}:{PP+4*ks+3}], v[{c}:{c+15}]")

    loads()
    a("s_waitcnt vmcnt(0)")
    writes(0)
    loads()
    a("s_waitcnt lgkmcnt(0)")
    a("s_barrier")
    a.label(f".L{name}_loop")
    for b in range(2):
        a("s_cmp_gt_u32 s35, s37")
        a(f"s_cbranch_scc1 .L{name}_skip{b}")
        compute(b * BUF, b)
        a.label(f".L{name}_skip{b}")
        a("s_waitcnt vmcnt(0)")
        writes((b ^ 1) * BUF)
        loads()
        a("s_waitcnt lgkmcnt(0)")
        a("s_barrier")
        a("s_add_u32 s35, s35, 1")
    a("s_cmp_lt_u32 s35, s34")
    a.flush()
    a(f"s_cbranch_scc1 .L{name}_loop")
    a("s_waitcnt vmcnt(0)")
    a(f"v_mov_b32 v{VT1}, v{VL}")
    a(f"v_permlane32_swap_b32 v{VL}, v{VT1}")
    a(f"v_add_f32 v{VL}, v{VL}, v{VT1}")
    a(f"v_rcp_f32 v{VL}, v{VL}")
    a("v_lshlrev_b32 v6, 13, v5")
    a("v_lshlrev_b32 v7, 3, v4")
    a("v_add_u32 v6, v6, v7")
    a("v_add_u32 v6, s32, v6")
    for dt in range(4):
        for j in range(4):
            r = OA + 16 * dt + 4 * j
            for q in range(4):
                a(f"v_mul_f32 v{r+q}, v{r+q}, v{VL}")
            a(f"v_cvt_pk_bf16_f32 v{r}, v{r}, v{r+1}")
            a(f"v_cvt_pk_bf16_f32 v{r+1}, v{r+2}, v{r+3}")
            a(f"buffer_store_dwordx2 v[{r}:{r+1}], v6, s[24:27], 0 offen offset:{(32*dt+8*j)*2}")
    a.label(f".L{name}_end")
    a("s_endpgm")
    kernels.append((name, (512, 1, 1), (256, 1, 1), 2 * BUF, 240, 56))


def main():
    a = Asm()
    k_mod(a)
    k_ln(a, "ln1_kernel", False, 0, WS_H, 0, 1)
    k_qkv(a)
    k_attn(a)
    k_resid_gemm(a, "oproj_kernel", WS_CTX, 16 * MB, 4096, KA_WO, 4 * MB, False, 0, True, WS_X1, 2)
    k_ln(a, "ln2_kernel", True, WS_X1, WS_H2, 3, 4)
    k_ffn1(a)
    k_resid_gemm(a, "ffn2_kernel", WS_F, 2048 * 1792 * 2, 1792, KA_W2, 1792 * 512 * 2, True, WS_X1, False, 0, 5)
    hdr = []
    ref = open(f"cdna_kernels/{NAME}.s.ref").read().split("\n")
    for l in ref:
        if l.startswith("; @launch") or l.startswith("; Override") or l.startswith("; grid="):
            continue
        if l.startswith(";"):
            hdr.append(l)
        else:
            break
    for (n, g, b, lds, v, s) in kernels:
        hdr.append(f"; @launch kernel={n} grid=({g[0]},{g[1]},{g[2]}) block=({b[0]},{b[1]},{b[2]}) lds={lds}")
    txt = "\n".join(hdr) + "\n"
    txt += '.amdgcn_target "amdgcn-amd-amdhsa--gfx950"\n.text\n'
    txt += a.text()
    txt += '.section .rodata,"a"\n'
    seen = set()
    for (n, g, b, lds, v, s) in kernels:
        if n in seen:
            continue
        seen.add(n)
        v4 = (v + 3) // 4 * 4
        txt += f""".p2align 6
.amdhsa_kernel {n}
  .amdhsa_next_free_vgpr {v4}
  .amdhsa_next_free_sgpr {s}
  .amdhsa_accum_offset {v4}
  .amdhsa_group_segment_fixed_size 0
  .amdhsa_kernarg_size 112
  .amdhsa_user_sgpr_count 2
  .amdhsa_user_sgpr_kernarg_segment_ptr 1
  .amdhsa_system_sgpr_workgroup_id_x 1
.end_amdhsa_kernel
"""
    open(f"cdna_kernels/{NAME}.s", "w").write(txt)
    print("written", len(txt), "bytes")


main()
```

```python
import re

TRANS = ("v_exp_f32", "v_log_f32", "v_rcp_f32", "v_rsq_f32", "v_sqrt_f32", "v_sin_f32", "v_cos_f32")

_reg_re = re.compile(r"\b([vsa])(\d+)\b|\b([vsa])\[(\d+):(\d+)\]|\b(vcc|exec|m0|scc)\b")


def regs_of(tok):
    out = set()
    for m in _reg_re.finditer(tok):
        if m.group(1):
            out.add((m.group(1), int(m.group(2))))
        elif m.group(3):
            for i in range(int(m.group(4)), int(m.group(5)) + 1):
                out.add((m.group(3), i))
        else:
            out.add((m.group(6), 0))
    return out


def split_ops(s):
    ops, depth, cur = [], 0, ""
    for ch in s:
        if ch == "[":
            depth += 1
        elif ch == "]":
            depth -= 1
        if ch == "," and depth == 0:
            ops.append(cur.strip())
            cur = ""
        else:
            cur += ch
    if cur.strip():
        ops.append(cur.strip())
    return ops


class Ins:
    __slots__ = ("text", "op", "wr", "rd", "kind", "passes", "srcc", "srcab", "ws", "store_data")

    def __init__(self, text):
        self.text = text
        t = text.split(";")[0].strip()
        parts = t.split(None, 1)
        self.op = parts[0]
        rest = parts[1] if len(parts) > 1 else ""
        ops = split_ops(rest)
        self.wr, self.rd = set(), set()
        self.kind = "other"
        self.passes = 0
        self.srcc = set()
        self.srcab = set()
        self.store_data = set()
        self.ws = 1
        op = self.op
        if op == "s_nop":
            self.ws = int(ops[0], 0) + 1
            self.kind = "nop"
        elif op.startswith("v_mfma"):
            self.kind = "mfma"
            self.passes = 8 if "32x32" in op else 4
            self.wr = regs_of(ops[0])
            self.srcab = regs_of(ops[1]) | regs_of(ops[2])
            self.srcc = regs_of(ops[3])
            self.rd = self.srcab | self.srcc
        elif op.startswith("v_cmp"):
            self.kind = "valu"
            self.wr = regs_of(ops[0])
            for o in ops[1:]:
                self.rd |= regs_of(o)
        elif op.startswith("v_readfirstlane") or op.startswith("v_readlane"):
            self.kind = "valu"
            self.wr = regs_of(ops[0])
            for o in ops[1:]:
                self.rd |= regs_of(o)
        elif op.startswith("v_permlane"):
            self.kind = "valu"
            self.wr = regs_of(ops[0]) | regs_of(ops[1])
            self.rd = set(self.wr)
        elif op.startswith("v_"):
            self.kind = "valu"
            self.wr = regs_of(ops[0])
            i = 1
            if op.startswith(("v_add_co", "v_sub_co", "v_addc_co", "v_subb_co")):
                self.wr |= regs_of(ops[1])
                i = 2
            for o in ops[i:]:
                self.rd |= regs_of(o)
            if op.startswith(("v_fmac", "v_pk_fmac")):
                self.rd |= regs_of(ops[0])
        elif op.startswith("buffer_load") and t.endswith(" lds"):
            self.kind = "mem"
            for o in ops:
                self.rd |= regs_of(o)
            self.rd.add(("m0", 0))
        elif op.startswith(("buffer_load", "global_load", "ds_read", "ds_bpermute", "ds_swizzle", "ds_permute")):
            self.kind = "mem"
            self.wr = regs_of(ops[0])
            for o in ops[1:]:
                self.rd |= regs_of(o)
        elif op.startswith(("buffer_store", "global_store")):
            self.kind = "mem"
            for o in ops:
                self.rd |= regs_of(o)
            di = 0 if op.startswith("buffer_store") else 1
            if op.endswith(("x3", "x4")):
                self.store_data = regs_of(ops[di])
        elif op.startswith("ds_write"):
            self.kind = "mem"
            for o in ops:
                self.rd |= regs_of(o)
        elif op.startswith("s_"):
            self.kind = "salu"
            if ops and not op.startswith(("s_cmp", "s_cbranch", "s_branch", "s_waitcnt", "s_barrier", "s_endpgm", "s_setprio")):
                self.wr = regs_of(ops[0])
                for o in ops[1:]:
                    self.rd |= regs_of(o)
            else:
                for o in ops:
                    self.rd |= regs_of(o)


def need_ws(p, c):
    n = 0
    vw = {r for r in p.wr if r[0] in ("v", "a")}
    sw = {r for r in p.wr if r[0] in ("s", "vcc")}
    if p.kind == "valu":
        if c.kind == "mfma" and (vw & c.rd):
            n = max(n, 2)
        if c.kind == "valu":
            if sw & c.rd:
                n = max(n, 4 if c.op.startswith(("v_readlane", "v_writelane")) else 2)
            if c.op.startswith(("v_readfirstlane", "v_readlane")) and (vw & c.rd):
                n = max(n, 1)
            if c.op.startswith("v_permlane") and (vw & c.rd):
                n = max(n, 2)
            if "dpp" in c.text and (vw & c.rd):
                n = max(n, 2)
            if re.sub(r"_e(32|64)$", "", p.op) in TRANS and (vw & (c.rd | c.wr)):
                n = max(n, 1)
        if c.kind == "mem" and (sw & c.rd):
            n = max(n, 5)
        if c.kind == "salu" and (sw & c.rd):
            n = max(n, 1)
    if p.kind == "mfma":
        big = p.passes == 8
        if c.kind == "mfma":
            if p.wr & c.srcab:
                n = max(n, 12 if big else 8)
            if p.wr & c.srcc:
                if not (p.wr == c.srcc and p.passes == c.passes):
                    n = max(n, 10 if big else 6)
            if (p.wr & c.wr) and not (p.wr == c.wr and p.passes == c.passes):
                n = max(n, 10 if big else 6)
        elif c.kind in ("valu", "mem"):
            if p.wr & (c.rd | c.wr):
                n = max(n, 12 if big else 8)
            if c.kind == "valu" and (p.srcc & c.wr):
                n = max(n, 7 if big else 3)
    if p.kind == "salu" and ("m0", 0) in p.wr and c.kind == "mem" and ("m0", 0) in c.rd:
        n = max(n, 1)
    if p.store_data and (p.store_data & c.wr):
        n = max(n, 2 if c.kind == "valu" else 1)
    return n


class Asm:
    def __init__(self):
        self.out = []
        self.hist = []
        self.uid = 0

    def raw(self, text):
        self.out.append(text)

    def label(self, name):
        self.flush()
        self.out.append(f"{name}:")

    def newlabel(self, base="L"):
        self.uid += 1
        return f".{base}_{self.uid}"

    def flush(self):
        need = 0
        dist = 0
        for p in reversed(self.hist):
            if p.kind == "mfma":
                need = max(need, (12 if p.passes == 8 else 8) - dist)
            elif p.kind == "valu":
                need = max(need, 5 - dist)
            elif p.store_data:
                need = max(need, 2 - dist)
            dist += p.ws
            if dist > 24:
                break
        while need > 0:
            k = min(need, 16)
            self.out.append(f"    s_nop {k-1}")
            need -= k
        self.hist = []

    def __call__(self, text):
        for line in text.strip().split("\n"):
            line = line.strip()
            if not line or line.startswith(";"):
                continue
            ins = Ins(line)
            if ins.op.startswith(("s_cbranch", "s_branch")):
                self.flush()
            need = 0
            dist = 0
            for p in reversed(self.hist):
                need = max(need, need_ws(p, ins) - dist)
                dist += p.ws
                if dist > 24:
                    break
            while need > 0:
                k = min(need, 16)
                self.out.append(f"    s_nop {k-1}")
                self.hist.append(Ins(f"s_nop {k-1}"))
                need -= k
            self.out.append("    " + line)
            self.hist.append(ins)
            if len(self.hist) > 64:
                self.hist = self.hist[-40:]
            if ins.op.startswith(("s_cbranch", "s_branch")):
                pass

    def text(self):
        return "\n".join(self.out) + "\n"


def vr(b, n=1):
    return f"v{b}" if n == 1 else f"v[{b}:{b+n-1}]"


def sr(b, n=1):
    return f"s{b}" if n == 1 else f"s[{b}:{b+n-1}]"
```

```python
import sys, os
sys.path.insert(0, os.path.dirname(os.path.abspath(__file__)))
from asmlib import Asm, vr, sr

NAME = "adaLN_cond__compressed_kv_cla__dense_activation_relu__prompt"
MB = 1 << 20
WS_MOD = 0
WS_H = 1 * MB
WS_Q = 4 * MB
WS_K = 20 * MB
WS_V = 36 * MB
WS_CTX = 52 * MB
WS_X1 = 68 * MB
WS_H2 = 70 * MB
WS_F = 72 * MB
WS_P = 80 * MB

KA_X, KA_CKV, KA_WQ, KA_WUK, KA_WUV, KA_WO, KA_BX, KA_W1, KA_W2, KA_C, KA_WMOD, KA_OUT, KA_DBG, KA_WS = [8 * i for i in range(14)]

kernels = []


def begin(a, name):
    a.raw(f".globl {name}")
    a.raw(".p2align 8")
    a.raw(f".type {name},@function")
    a.raw(f"{name}:")
    a.hist = []


def srd(a, d, p, off, size):
    if off:
        a(f"s_add_u32 s{d}, s{p}, {hex(off & 0xffffffff)}")
        a(f"s_addc_u32 s{d+1}, s{p+1}, {hex(off >> 32)}")
        a(f"s_and_b32 s{d+1}, s{d+1}, 0xffff")
    else:
        a(f"s_mov_b32 s{d}, s{p}")
        a(f"s_and_b32 s{d+1}, s{p+1}, 0xffff")
    a(f"s_mov_b32 s{d+2}, {hex(size)}")
    a(f"s_mov_b32 s{d+3}, 0x20000")


def round_bf16(a, dst, src, tmp=None):
    a(f"v_cvt_pk_bf16_f32 v{dst}, v{src}, v{src}")
    a(f"v_lshlrev_b32 v{dst}, 16, v{dst}")


def unpack2(a, lo, hi, src):
    a(f"v_lshlrev_b32 v{lo}, 16, v{src}")
    a(f"v_and_b32 v{hi}, 0xffff0000, v{src}")


def allreduce_sum(a, v, t):
    for pat in (0x041F, 0x081F, 0x101F, 0x201F, 0x401F):
        a(f"ds_swizzle_b32 v{t}, v{v} offset:{hex(pat)}")
        a("s_waitcnt lgkmcnt(0)")
        a(f"v_add_f32 v{v}, v{v}, v{t}")
    a(f"v_mov_b32 v{t}, v{v}")
    a(f"v_permlane32_swap_b32 v{v}, v{t}")
    a(f"v_add_f32 v{v}, v{v}, v{t}")


def k_mod(a):
    name = "mod_kernel"
    begin(a, name)
    a("s_cmp_ge_u32 s2, 48")
    a(f"s_cbranch_scc1 .L{name}_end")
    a(f"s_load_dwordx2 s[4:5], s[0:1], {KA_C}")
    a(f"s_load_dwordx2 s[6:7], s[0:1], {KA_WMOD}")
    a(f"s_load_dwordx2 s[8:9], s[0:1], {KA_WS}")
    a("s_waitcnt lgkmcnt(0)")
    srd(a, 12, 4, 0, 1024)
    srd(a, 16, 6, 0, 512 * 3072 * 2)
    srd(a, 20, 8, WS_MOD, 3072 * 4)
    a("v_and_b32 v1, 7, v0")
    a("v_lshrrev_b32 v2, 3, v0")
    a("v_lshlrev_b32 v3, 5, v2")
    a("buffer_load_dwordx4 v[8:11], v3, s[12:15], 0 offen")
    a("buffer_load_dwordx4 v[12:15], v3, s[12:15], 0 offen offset:16")
    a("s_lshl_b32 s24, s2, 7")
    a("v_mul_u32_u24 v4, 16*6144, v2")
    a("v_lshlrev_b32 v5, 4, v1")
    a("v_add_u32 v4, v4, v5")
    a("v_add_u32 v4, s24, v4")
    for r in range(16):
        a(f"buffer_load_dwordx4 v[{64+4*r}:{67+4*r}], v4, s[16:19], 0 offen")
        if r < 15:
            a(f"v_add_u32 v4, 6144, v4")
    a("s_waitcnt vmcnt(16)")
    for i in range(8):
        unpack2(a, 16 + 2 * i, 17 + 2 * i, 8 + i)
    for i in range(16):
        a(f"v_mul_f32 v32, 0xbfb8aa3b, v{16+i}")
        a("v_exp_f32 v32, v32")
        a("v_add_f32 v32, 1.0, v32")
        a("v_rcp_f32 v32, v32")
        a(f"v_mul_f32 v{16+i}, v{16+i}, v32")
        round_bf16(a, 16 + i, 16 + i)
    for j in range(8):
        a(f"v_mov_b32 v{40+j}, 0")
    a("s_waitcnt vmcnt(0)")
    for r in range(16):
        for q in range(4):
            unpack2(a, 32, 33, 64 + 4 * r + q)
            a(f"v_fmac_f32 v{40+2*q}, v32, v{16+r}")
            a(f"v_fmac_f32 v{41+2*q}, v33, v{16+r}")
    a("v_lshlrev_b32 v5, 8, v2")
    a("v_lshlrev_b32 v6, 5, v1")
    a("v_add_u32 v5, v5, v6")
    a("ds_write_b128 v5, v[40:43]")
    a("ds_write_b128 v5, v[44:47] offset:16")
    a("s_waitcnt lgkmcnt(0)")
    a("s_barrier")
    a("v_cmp_gt_u32 vcc, 64, v0")
    a("s_and_saveexec_b64 s[26:27], vcc")
    a(f"s_cbranch_execz .L{name}_end")
    a("v_lshlrev_b32 v5, 2, v0")
    for g in range(32):
        a(f"ds_read_b32 v{64+g}, v5 offset:{g*256}")
    a("s_waitcnt lgkmcnt(0)")
    for g in range(1, 32):
        a(f"v_add_f32 v64, v64, v{64+g}")
    round_bf16(a, 64, 64)
    a("s_lshl_b32 s24, s2, 8")
    a("v_add_u32 v5, s24, v5")
    a("buffer_store_dword v64, v5, s[20:23], 0 offen")
    a.label(f".L{name}_end")
    a("s_endpgm")
    kernels.append((name, (48, 1, 1), (256, 1, 1), 8192, 128, 32))


def k_ln(a, name, src_is_ws, src_off, dst_off, sh_idx, sc_idx, reduce_gate=None):
    begin(a, name)
    a("s_cmp_ge_u32 s2, 512")
    a(f"s_cbranch_scc1 .L{name}_end")
    a(f"s_load_dwordx2 s[4:5], s[0:1], {KA_X}")
    a(f"s_load_dwordx2 s[8:9], s[0:1], {KA_WS}")
    a("s_waitcnt lgkmcnt(0)")
    if src_is_ws and reduce_gate is None:
        srd(a, 12, 8, src_off, 2 * MB)
    else:
        srd(a, 12, 4, 0, 2 * MB)
    srd(a, 16, 8, WS_MOD, 3072 * 4)
    srd(a, 20, 8, dst_off, 2 * MB)
    a("v_and_b32 v1, 63, v0")
    a("v_lshrrev_b32 v2, 6, v0")
    a("s_lshl_b32 s24, s2, 2")
    a("v_add_u32 v2, s24, v2")
    a("v_lshlrev_b32 v3, 10, v2")
    a("v_lshlrev_b32 v4, 4, v1")
    a("v_add_u32 v3, v3, v4")
    a("buffer_load_dwordx4 v[8:11], v3, s[12:15], 0 offen")
    a("v_lshlrev_b32 v5, 5, v1")
    if reduce_gate is not None:
        srd(a, 24, 8, WS_P, 16 * MB)
        srd(a, 28, 8, src_off, 2 * MB)
        a("v_lshlrev_b32 v6, 1, v3")
        for p in range(4):
            a(f"s_mov_b32 s33, {p*4*MB}")
            a(f"buffer_load_dwordx4 v[{56+8*p}:{59+8*p}], v6, s[24:27], s33 offen")
            a(f"buffer_load_dwordx4 v[{60+8*p}:{63+8*p}], v6, s[24:27], s33 offen offset:16")
        a(f"v_add_u32 v6, {reduce_gate*2048}, v5")
        a("buffer_load_dwordx4 v[40:43], v6, s[16:19], 0 offen")
        a("buffer_load_dwordx4 v[44:47], v6, s[16:19], 0 offen offset:16")
        a("s_waitcnt vmcnt(0)")
        for i in range(4):
            unpack2(a, 16 + 2 * i, 17 + 2 * i, 8 + i)
        for i in range(8):
            a(f"v_add_f32 v{56+i}, v{56+i}, v{64+i}")
            a(f"v_add_f32 v{72+i}, v{72+i}, v{80+i}")
            a(f"v_add_f32 v{56+i}, v{56+i}, v{72+i}")
            round_bf16(a, 56 + i, 56 + i)
            a(f"v_mul_f32 v{56+i}, v{56+i}, v{40+i}")
            round_bf16(a, 56 + i, 56 + i)
            a(f"v_add_f32 v{16+i}, v{16+i}, v{56+i}")
        for i in range(4):
            a(f"v_cvt_pk_bf16_f32 v{8+i}, v{16+2*i}, v{17+2*i}")
        a("buffer_store_dwordx4 v[8:11], v3, s[28:31], 0 offen")
    a(f"v_add_u32 v6, {sc_idx*2048}, v5")
    a("buffer_load_dwordx4 v[40:43], v6, s[16:19], 0 offen")
    a("buffer_load_dwordx4 v[44:47], v6, s[16:19], 0 offen offset:16")
    a(f"v_add_u32 v6, {sh_idx*2048}, v5")
    a("buffer_load_dwordx4 v[48:51], v6, s[16:19], 0 offen")
    a("buffer_load_dwordx4 v[52:55], v6, s[16:19], 0 offen offset:16")
    a("s_waitcnt vmcnt(4)")
    for i in range(4):
        unpack2(a, 16 + 2 * i, 17 + 2 * i, 8 + i)
    a("v_add_f32 v24, v16, v17")
    for i in range(2, 8):
        a(f"v_add_f32 v24, v24, v{16+i}")
    allreduce_sum(a, 24, 25)
    a("v_mul_f32 v24, 0x3b000000, v24")
    a("v_mov_b32 v26, 0")
    for i in range(8):
        a(f"v_sub_f32 v27, v{16+i}, v24")
        a("v_fmac_f32 v26, v27, v27")
    allreduce_sum(a, 26, 25)
    a("v_mul_f32 v26, 0x3b000000, v26")
    round_bf16(a, 24, 24)
    round_bf16(a, 26, 26)
    a("v_add_f32 v26, 0x3727c5ac, v26")
    round_bf16(a, 26, 26)
    a("v_sqrt_f32 v26, v26")
    round_bf16(a, 26, 26)
    a("v_rcp_f32 v26, v26")
    a("s_waitcnt vmcnt(0)")
    for i in range(8):
        a(f"v_sub_f32 v{16+i}, v{16+i}, v24")
        round_bf16(a, 16 + i, 16 + i)
        a(f"v_mul_f32 v{16+i}, v{16+i}, v26")
        round_bf16(a, 16 + i, 16 + i)
        a(f"v_add_f32 v{40+i}, 1.0, v{40+i}")
        round_bf16(a, 40 + i, 40 + i)
        a(f"v_mul_f32 v{16+i}, v{16+i}, v{40+i}")
        round_bf16(a, 16 + i, 16 + i)
        a(f"v_add_f32 v{16+i}, v{16+i}, v{48+i}")
    for i in range(4):
        a(f"v_cvt_pk_bf16_f32 v{8+i}, v{16+2*i}, v{17+2*i}")
    a("buffer_store_dwordx4 v[8:11], v3, s[20:23], 0 offen")
    a.label(f".L{name}_end")
    a("s_endpgm")
    kernels.append((name, (512, 1, 1), (256, 1, 1), 0, 96, 40))


ASTR = 144
def gemm_body(a, name, K, lda, ldb, ldc, BM, BN, epi):
    WM, WN = BM // 64, BN // 64
    BSTR = BN * 2 + 64
    ABYTES = BM * ASTR
    BBYTES = 64 * BSTR
    BUF = ABYTES + BBYTES
    NA = BM * 128 // 4096
    NB = 64 * BN * 2 // 4096
    ACC = 16
    nacc = WM * WN * 16
    FA = ACC + nacc
    FB = FA + 2 * WM * 4
    ST = FB + 2 * WN * 4
    NST = 4 * (NA + NB)
    top = ST + 2 * NST
    STAMP = os.environ.get("STAMP", "") == name
    def stamp(i):
        if STAMP:
            a(f"s_memtime s[{60+2*i}:{61+2*i}]")
            a("s_waitcnt lgkmcnt(0)")
    stamp(0)
    a("v_and_b32 v1, 63, v0")
    a("v_lshrrev_b32 v2, 6, v0")
    a("v_lshrrev_b32 v3, 3, v0")
    a("v_and_b32 v4, 7, v0")
    a(f"v_mul_u32_u24 v5, {lda*2}, v3")
    a("v_lshlrev_b32 v6, 4, v4")
    a("v_add_u32 v5, v5, v6")
    a("v_add_u32 v5, s24, v5")
    a(f"v_mul_u32_u24 v7, {ASTR}, v3")
    a("v_add_u32 v7, v7, v6")
    CB = BN // 8
    RB = 256 // CB
    sh = CB.bit_length() - 1
    a(f"v_lshrrev_b32 v3, {sh}, v0")
    a(f"v_and_b32 v4, {CB-1}, v0")
    a(f"v_mul_u32_u24 v8, {ldb*2}, v3")
    a("v_lshlrev_b32 v6, 4, v4")
    a("v_add_u32 v8, v8, v6")
    a("v_add_u32 v8, s25, v8")
    a(f"v_mul_u32_u24 v9, {BSTR}, v3")
    a("v_add_u32 v9, v9, v6")
    a(f"v_add_u32 v9, {ABYTES}, v9")
    a("v_lshrrev_b32 v3, 1, v2")
    a("v_and_b32 v4, 1, v2")
    a("v_and_b32 v6, 31, v1")
    a(f"v_mul_u32_u24 v10, {32*WM}, v3")
    a("v_add_u32 v10, v10, v6")
    a(f"v_mul_u32_u24 v10, {ASTR}, v10")
    a("v_lshrrev_b32 v11, 5, v1")
    a("v_lshlrev_b32 v12, 4, v11")
    a("v_add_u32 v10, v10, v12")
    a("v_and_b32 v12, 15, v1")
    a("v_lshrrev_b32 v13, 2, v12")
    a("v_lshlrev_b32 v14, 3, v11")
    a("v_add_u32 v13, v13, v14")
    a(f"v_mul_u32_u24 v13, {BSTR}, v13")
    a("v_lshrrev_b32 v14, 4, v1")
    a("v_and_b32 v14, 1, v14")
    a("v_lshlrev_b32 v14, 4, v14")
    a("v_and_b32 v15, 3, v12")
    a("v_lshlrev_b32 v15, 2, v15")
    a("v_add_u32 v14, v14, v15")
    a(f"v_mul_u32_u24 v15, {32*WN}, v4")
    a("v_add_u32 v14, v14, v15")
    a("v_lshlrev_b32 v14, 1, v14")
    a("v_add_u32 v13, v13, v14")
    a(f"v_add_u32 v13, {ABYTES}, v13")
    a(f"v_add_u32 v11, {BUF}, v10")
    a(f"v_add_u32 v14, {BUF}, v13")
    a(f"v_add_u32 v12, {BUF}, v7")
    a(f"v_add_u32 v15, {BUF}, v9")
    a("s_mov_b32 s28, 0")
    a("s_mov_b32 s29, 0")

    def loads(set_):
        S0 = ST + set_ * NST
        for j in range(NA):
            off = j * 32 * lda * 2
            if off < 4096:
                a(f"buffer_load_dwordx4 v[{S0+4*j}:{S0+4*j+3}], v5, s[12:15], s28 offen offset:{off}")
            else:
                a(f"s_add_u32 s31, s28, {off}")
                a(f"buffer_load_dwordx4 v[{S0+4*j}:{S0+4*j+3}], v5, s[12:15], s31 offen")
        for j in range(NB):
            off = j * RB * ldb * 2
            r = S0 + 4 * (NA + j)
            if off < 4096:
                a(f"buffer_load_dwordx4 v[{r}:{r+3}], v8, s[16:19], s29 offen offset:{off}")
            else:
                a(f"s_add_u32 s31, s29, {off}")
                a(f"buffer_load_dwordx4 v[{r}:{r+3}], v8, s[16:19], s31 offen")
        a("s_add_u32 s28, s28, 128")
        a(f"s_add_u32 s29, s29, {64*ldb*2}")

    def writes(buf, set_):
        S0 = ST + set_ * NST
        va, vb = (7, 9) if buf == 0 else (12, 15)
        for j in range(NA):
            a(f"ds_write_b128 v{va}, v[{S0+4*j}:{S0+4*j+3}] offset:{j*32*ASTR}")
        for j in range(NB):
            r = S0 + 4 * (NA + j)
            a(f"ds_write_b128 v{vb}, v[{r}:{r+3}] offset:{j*RB*BSTR}")

    def frag_reads(buf, s):
        va, vb = (10, 13) if buf == 0 else (11, 14)
        st = s & 1
        for mt in range(WM):
            r = FA + (st * WM + mt) * 4
            a(f"ds_read_b128 v[{r}:{r+3}], v{va} offset:{mt*32*ASTR + s*32}")
        for nt in range(WN):
            r = FB + (st * WN + nt) * 4
            for q in range(2):
                a(f"ds_read_b64_tr_b16 v[{r+2*q}:{r+2*q+1}], v{vb} offset:{(16*s+4*q)*BSTR + nt*64}")

    nrd = WM + 2 * WN

    def compute(buf):
        frag_reads(buf, 0)
        for s in range(4):
            if s < 3:
                frag_reads(buf, s + 1)
                a(f"s_waitcnt lgkmcnt({nrd})")
            else:
                a("s_waitcnt lgkmcnt(0)")
            st = s & 1
            for mt in range(WM):
                for nt in range(WN):
                    c = ACC + (mt * WN + nt) * 16
                    fa = FA + (st * WM + mt) * 4
                    fb = FB + (st * WN + nt) * 4
                    a(f"v_mfma_f32_32x32x16_bf16 v[{c}:{c+15}], v[{fb}:{fb+3}], v[{fa}:{fa+3}], v[{c}:{c+15}]")

    loads(0)
    loads(1)
    for i in range(nacc):
        a(f"v_mov_b32 v{ACC+i}, 0")
    a(f"s_waitcnt vmcnt({NA+NB})")
    writes(0, 0)
    loads(0)
    a("s_waitcnt lgkmcnt(0)")
    a("s_barrier")
    stamp(1)
    KT = K // 64
    assert KT % 2 == 0
    a(f"s_mov_b32 s30, {KT//2}")
    a.label(f".L{name}_loop")
    for buf in range(2):
        compute(buf)
        a(f"s_waitcnt vmcnt({NA+NB})")
        writes(buf ^ 1, buf ^ 1)
        loads(buf ^ 1)
        a("s_waitcnt lgkmcnt(0)")
        a("s_barrier")
    a("s_sub_u32 s30, s30, 1")
    a("s_cmp_lg_u32 s30, 0")
    a.flush()
    a(f"s_cbranch_scc1 .L{name}_loop")
    stamp(2)
    a("s_waitcnt vmcnt(0)")
    a(f"v_mul_u32_u24 v5, {32*WM}, v3")
    a("v_add_u32 v5, v5, v6")
    a(f"v_mul_u32_u24 v7, {32*WN}, v4")
    a("v_lshrrev_b32 v8, 5, v1")
    a("v_lshlrev_b32 v8, 2, v8")
    a("v_add_u32 v7, v7, v8")
    epi(a, ACC, WM, WN, top)
    if STAMP:
        a("s_waitcnt vmcnt(0)")
        stamp(3)
        srd(a, 72, 8, 90 * MB, 4 * MB)
        a("s_lshl_b32 s76, s2, 5")
        a("v_lshlrev_b32 v1, 2, v0")
        a("v_add_u32 v1, s76, v1")
        a("v_cmp_gt_u32 vcc, 8, v0")
        a("s_and_saveexec_b64 s[78:79], vcc")
        a("v_mov_b32 v2, s60")
        for i in range(1, 8):
            a(f"v_mov_b32 v3, s{60+i}")
            a(f"v_cmp_eq_u32 vcc, {i}, v0")
            a("v_cndmask_b32 v2, v2, v3, vcc")
        a("buffer_store_dword v2, v1, s[72:75], 0 offen")
    return top, 2 * BUF


def epi_store(ldc, relu=False):
    CSTR = 272
    def f(a, ACC, WM, WN, top):
        assert WM == 2 and WN == 2
        a("s_barrier")
        a(f"v_mul_u32_u24 v9, {CSTR}, v5")
        a("v_lshlrev_b32 v10, 1, v7")
        a("v_add_u32 v9, v9, v10")
        for mt in range(WM):
            for nt in range(WN):
                c = ACC + (mt * WN + nt) * 16
                for j in range(4):
                    r = c + 4 * j
                    if relu:
                        for q in range(4):
                            a(f"v_max_f32 v{r+q}, 0, v{r+q}")
                    a(f"v_cvt_pk_bf16_f32 v{r}, v{r}, v{r+1}")
                    a(f"v_cvt_pk_bf16_f32 v{r+1}, v{r+2}, v{r+3}")
                    off = mt * 32 * CSTR + (nt * 32 + 8 * j) * 2
                    a(f"ds_write_b64 v9, v[{r}:{r+1}] offset:{off}")
        a("v_lshrrev_b32 v3, 4, v0")
        a("v_and_b32 v4, 15, v0")
        a("v_lshlrev_b32 v4, 4, v4")
        a(f"v_mul_u32_u24 v9, {CSTR}, v3")
        a("v_add_u32 v9, v9, v4")
        a(f"v_mul_u32_u24 v10, {ldc*2}, v3")
        a("v_add_u32 v10, v10, v4")
        a("v_add_u32 v10, s26, v10")
        a("s_waitcnt lgkmcnt(0)")
        a("s_barrier")
        for j in range(8):
            a(f"ds_read_b128 v[{ACC+4*j}:{ACC+4*j+3}], v9 offset:{j*16*CSTR}")
        for j in range(8):
            a(f"s_waitcnt lgkmcnt({7-j})")
            a(f"s_mov_b32 s31, {j*16*ldc*2}")
            a(f"buffer_store_dwordx4 v[{ACC+4*j}:{ACC+4*j+3}], v10, s[20:23], s31 offen")
    return f


def epi_resid(gate_idx):
    def f(a, ACC, WM, WN, top):
        ldc = 512
        a(f"v_mul_u32_u24 v9, {ldc*2}, v5")
        a("v_lshlrev_b32 v10, 1, v7")
        a("v_add_u32 v9, v9, v10")
        a("v_add_u32 v9, s26, v9")
        a("v_add_u32 v11, s27, v7")
        a("v_lshlrev_b32 v11, 2, v11")
        a(f"v_add_u32 v11, {gate_idx*2048}, v11")
        T = top
        for mt in range(WM):
            for nt in range(WN):
                c = ACC + (mt * WN + nt) * 16
                for j in range(4):
                    r = c + 4 * j
                    off = mt * 32 * ldc * 2 + (nt * 32 + 8 * j) * 2
                    a(f"s_mov_b32 s31, {off}")
                    a(f"buffer_load_dwordx2 v[{T}:{T+1}], v9, s[32:35], s31 offen")
                    a(f"buffer_load_dwordx4 v[{T+4}:{T+7}], v11, s[36:39], 0 offen offset:{(nt*32+8*j)*4}")
                    for q in range(4):
                        round_bf16(a, r + q, r + q)
                    a("s_waitcnt vmcnt(0)")
                    unpack2(a, T + 8, T + 9, T)
                    unpack2(a, T + 10, T + 11, T + 1)
                    for q in range(4):
                        a(f"v_mul_f32 v{r+q}, v{r+q}, v{T+4+q}")
                        round_bf16(a, r + q, r + q)
                        a(f"v_add_f32 v{r+q}, v{r+q}, v{T+8+q}")
                    a(f"v_cvt_pk_bf16_f32 v{r}, v{r}, v{r+1}")
                    a(f"v_cvt_pk_bf16_f32 v{r+1}, v{r+2}, v{r+3}")
                    a(f"buffer_store_dwordx2 v[{r}:{r+1}], v9, s[20:23], s31 offen")
    return f


def gemm2_body(a, name, KT, lda, ldb, epi):
    ACC, FA, FB = 16, 80, 96
    top = 112
    STG = 32768
    a("v_and_b32 v1, 63, v0")
    a("v_lshrrev_b32 v2, 6, v0")
    a("v_readfirstlane_b32 s52, v2")
    a("s_lshl_b32 s53, s52, 10")
    a("v_lshrrev_b32 v3, 3, v1")
    a("v_lshlrev_b32 v4, 3, v2")
    a("v_add_u32 v3, v3, v4")
    a("v_lshrrev_b32 v4, 1, v3")
    a("v_and_b32 v4, 7, v4")
    a("v_and_b32 v5, 7, v1")
    a("v_xor_b32 v4, v4, v5")
    a(f"v_mul_u32_u24 v5, {lda*2}, v3")
    a("v_lshlrev_b32 v4, 4, v4")
    a("v_add_u32 v5, v5, v4")
    a("v_add_u32 v5, s24, v5")
    a("v_lshrrev_b32 v3, 4, v1")
    a("v_lshrrev_b32 v4, 2, v1")
    a("v_and_b32 v4, 3, v4")
    a("v_xor_b32 v4, v4, v3")
    a("v_lshlrev_b32 v4, 2, v4")
    a("v_and_b32 v6, 3, v1")
    a("v_add_u32 v4, v4, v6")
    a("v_lshlrev_b32 v6, 2, v2")
    a("v_add_u32 v3, v3, v6")
    a(f"v_mul_u32_u24 v8, {ldb*2}, v3")
    a("v_lshlrev_b32 v4, 4, v4")
    a("v_add_u32 v8, v8, v4")
    a("v_add_u32 v8, s25, v8")
    a("v_lshrrev_b32 v3, 1, v2")
    a("v_and_b32 v4, 1, v2")
    a("v_and_b32 v6, 31, v1")
    a("v_lshrrev_b32 v7, 5, v1")
    a("v_lshlrev_b32 v9, 6, v3")
    a("v_add_u32 v9, v9, v6")
    a("v_lshlrev_b32 v9, 7, v9")
    a("v_lshrrev_b32 v14, 1, v6")
    a("v_and_b32 v14, 7, v14")
    for s in range(4):
        a(f"v_add_u32 v15, {2*s}, v7")
        a("v_xor_b32 v15, v15, v14")
        a("v_lshlrev_b32 v15, 4, v15")
        a(f"v_add_u32 v{10+s}, v9, v15")
    a("v_and_b32 v9, 15, v1")
    a("v_lshrrev_b32 v14, 2, v9")
    a("v_lshlrev_b32 v15, 3, v7")
    a("v_add_u32 v15, v15, v14")
    a("v_lshlrev_b32 v15, 8, v15")
    a("v_and_b32 v9, 3, v9")
    a("v_lshlrev_b32 v9, 3, v9")
    a("v_add_u32 v15, v15, v9")
    a("v_lshrrev_b32 v9, 4, v1")
    a("v_and_b32 v9, 1, v9")
    a("v_lshlrev_b32 v9, 5, v9")
    a("v_add_u32 v15, v15, v9")
    a("v_add_u32 v15, 16384, v15")
    a("v_lshlrev_b32 v9, 1, v4")
    a("v_xor_b32 v7, v9, v14")
    a("v_lshlrev_b32 v7, 6, v7")
    a("v_add_u32 v7, v15, v7")
    a("v_add_u32 v9, 1, v9")
    a("v_xor_b32 v9, v9, v14")
    a("v_lshlrev_b32 v9, 6, v9")
    a("v_add_u32 v15, v15, v9")
    VB = (7, 15)

    def dma(buf):
        for t in range(4):
            a(f"s_add_u32 m0, s53, {buf*STG + t*4096}")
            a(f"s_add_u32 s31, s28, {t*32*lda*2}")
            a("buffer_load_dwordx4 v5, s[12:15], s31 offen lds")
        for t in range(4):
            a(f"s_add_u32 m0, s53, {buf*STG + 16384 + t*4096}")
            a(f"s_add_u32 s31, s29, {t*16*ldb*2}")
            a("buffer_load_dwordx4 v8, s[16:19], s31 offen lds")
        a("s_add_u32 s28, s28, 128")
        a(f"s_add_u32 s29, s29, {64*ldb*2}")

    def frag_reads(buf, s):
        st = s & 1
        for mt in range(2):
            r = FA + (st * 2 + mt) * 4
            a(f"ds_read_b128 v[{r}:{r+3}], v{10+s} offset:{buf*STG + mt*4096}")
        for nt in range(2):
            r = FB + (st * 2 + nt) * 4
            for q in range(2):
                a(f"ds_read_b64_tr_b16 v[{r+2*q}:{r+2*q+1}], v{VB[nt]} offset:{buf*STG + (16*s+4*q)*256}")

    def compute(buf):
        frag_reads(buf, 0)
        for s in range(4):
            if s < 3:
                frag_reads(buf, s + 1)
                a("s_waitcnt lgkmcnt(6)")
            else:
                a("s_waitcnt lgkmcnt(0)")
            st = s & 1
            for mt in range(2):
                for nt in range(2):
                    c = ACC + (mt * 2 + nt) * 16
                    fa = FA + (st * 2 + mt) * 4
                    fb = FB + (st * 2 + nt) * 4
                    a(f"v_mfma_f32_32x32x16_bf16 v[{c}:{c+15}], v[{fb}:{fb+3}], v[{fa}:{fa+3}], v[{c}:{c+15}]")

    dma(0)
    for i in range(64):
        a(f"v_mov_b32 v{ACC+i}, 0")
    assert KT % 2 == 0
    a(f"s_mov_b32 s30, {KT//2}")
    a.label(f".L{name}_loop")
    for buf in range(2):
        a("s_waitcnt vmcnt(0)")
        a("s_barrier")
        dma(buf ^ 1)
        compute(buf)
    a("s_sub_u32 s30, s30, 1")
    a("s_cmp_lg_u32 s30, 0")
    a(f"s_cbranch_scc1 .L{name}_loop")
    a("s_waitcnt vmcnt(0)")
    a("v_lshlrev_b32 v5, 6, v3")
    a("v_add_u32 v5, v5, v6")
    a("v_lshlrev_b32 v7, 6, v4")
    a("v_lshrrev_b32 v8, 5, v1")
    a("v_lshlrev_b32 v8, 2, v8")
    a("v_add_u32 v7, v7, v8")
    epi(a, ACC, 2, 2, top)
    return top, 2 * STG


def epi_store_f32(ldc):
    CSTR = 528
    def f(a, ACC, WM, WN, top):
        a("s_barrier")
        a(f"v_mul_u32_u24 v9, {CSTR}, v5")
        a("v_lshlrev_b32 v10, 2, v7")
        a("v_add_u32 v9, v9, v10")
        for mt in range(WM):
            for nt in range(WN):
                c = ACC + (mt * WN + nt) * 16
                for j in range(4):
                    r = c + 4 * j
                    off = mt * 32 * CSTR + (nt * 32 + 8 * j) * 4
                    a(f"ds_write_b128 v9, v[{r}:{r+3}] offset:{off}")
        a("v_lshrrev_b32 v3, 5, v0")
        a("v_and_b32 v4, 31, v0")
        a("v_lshlrev_b32 v4, 4, v4")
        a(f"v_mul_u32_u24 v9, {CSTR}, v3")
        a("v_add_u32 v9, v9, v4")
        a(f"v_mul_u32_u24 v10, {ldc*4}, v3")
        a("v_add_u32 v10, v10, v4")
        a("v_add_u32 v10, s26, v10")
        a("s_waitcnt lgkmcnt(0)")
        a("s_barrier")
        for j in range(16):
            a(f"ds_read_b128 v[{ACC+4*j}:{ACC+4*j+3}], v9 offset:{j*8*CSTR}")
        for j in range(16):
            a(f"s_waitcnt lgkmcnt({15-j})")
            a(f"s_mov_b32 s31, {j*8*ldc*4}")
            a(f"buffer_store_dwordx4 v[{ACC+4*j}:{ACC+4*j+3}], v10, s[20:23], s31 offen")
    return f


def k_qkv(a):
    name = "qkv_kernel"
    begin(a, name)
    a("s_cmp_ge_u32 s2, 1536")
    a(f"s_cbranch_scc1 .L{name}_end")
    a(f"s_load_dwordx2 s[4:5], s[0:1], {KA_CKV}")
    a(f"s_load_dwordx4 s[40:43], s[0:1], {KA_WQ}")
    a(f"s_load_dwordx2 s[44:45], s[0:1], {KA_WUV}")
    a(f"s_load_dwordx2 s[8:9], s[0:1], {KA_WS}")
    a("s_waitcnt lgkmcnt(0)")
    a("s_and_b32 s49, s2, 7")
    a("s_lshr_b32 s50, s2, 3")
    a("s_mul_hi_u32 s46, s50, 0x15555556")
    a("s_mul_i32 s51, s46, 12")
    a("s_sub_u32 s51, s50, s51")
    a("s_mul_i32 s47, s49, 12")
    a("s_add_u32 s47, s47, s51")
    a("s_lshr_b32 s48, s47, 5")
    a("s_and_b32 s47, s47, 31")
    a("s_cmp_eq_u32 s48, 0")
    a(f"s_cbranch_scc0 .L{name}_kv")
    srd(a, 12, 8, WS_H, 2 * MB)
    srd(a, 16, 40, 0, 4 * MB)
    srd(a, 20, 8, WS_Q, 16 * MB)
    a(f"s_branch .L{name}_go")
    a.label(f".L{name}_kv")
    srd(a, 12, 4, 0, 2 * MB)
    a("s_cmp_eq_u32 s48, 1")
    a(f"s_cbranch_scc0 .L{name}_v")
    srd(a, 16, 42, 0, 4 * MB)
    srd(a, 20, 8, WS_K, 16 * MB)
    a(f"s_branch .L{name}_go")
    a.label(f".L{name}_v")
    srd(a, 16, 44, 0, 4 * MB)
    srd(a, 20, 8, WS_V, 16 * MB)
    a.label(f".L{name}_go")
    a(f"s_mul_i32 s24, s46, {128*512*2}")
    a("s_lshl_b32 s25, s47, 8")
    a("s_lshl_b32 s26, s47, 19")
    a("s_lshl_b32 s27, s46, 15")
    a("s_add_u32 s26, s26, s27")
    s_ = [a("s_mov_b32 s28, 0"), a("s_mov_b32 s29, 0")]
    top, lds = gemm2_body(a, name, 8, 512, 4096, epi_store(128))
    a.label(f".L{name}_end")
    a("s_endpgm")
    kernels.append((name, (1536, 1, 1), (256, 1, 1), lds, top + 16, 96))


def k_oproj_sk(a):
    name = "oproj_kernel"
    begin(a, name)
    a("s_cmp_ge_u32 s2, 256")
    a(f"s_cbranch_scc1 .L{name}_end")
    a(f"s_load_dwordx2 s[40:41], s[0:1], {KA_WO}")
    a(f"s_load_dwordx2 s[8:9], s[0:1], {KA_WS}")
    a("s_waitcnt lgkmcnt(0)")
    a("s_and_b32 s46, s2, 15")
    a("s_lshr_b32 s47, s2, 4")
    a("s_and_b32 s47, s47, 3")
    a("s_lshr_b32 s48, s2, 6")
    srd(a, 12, 8, WS_CTX, 16 * MB)
    srd(a, 16, 40, 0, 4 * MB)
    srd(a, 20, 8, WS_P, 16 * MB)
    a(f"s_mul_i32 s24, s46, {128*4096*2}")
    a("s_lshl_b32 s25, s47, 8")
    a("s_lshl_b32 s28, s48, 11")
    a("s_lshl_b32 s29, s48, 20")
    a("s_lshl_b32 s26, s48, 22")
    a(f"s_mul_i32 s27, s46, {128*512*4}")
    a("s_add_u32 s26, s26, s27")
    a("s_lshl_b32 s27, s47, 9")
    a("s_add_u32 s26, s26, s27")
    top, lds = gemm2_body(a, name, 16, 4096, 512, epi_store_f32(512))
    a.label(f".L{name}_end")
    a("s_endpgm")
    kernels.append((name, (256, 1, 1), (256, 1, 1), 128 * 528, top + 16, 56))


def k_ffn1(a):
    name = "ffn1_kernel"
    begin(a, name)
    a("s_cmp_ge_u32 s2, 224")
    a(f"s_cbranch_scc1 .L{name}_end")
    a(f"s_load_dwordx2 s[40:41], s[0:1], {KA_W1}")
    a(f"s_load_dwordx2 s[8:9], s[0:1], {KA_WS}")
    a("s_waitcnt lgkmcnt(0)")
    a("s_and_b32 s46, s2, 15")
    a("s_lshr_b32 s47, s2, 4")
    srd(a, 12, 8, WS_H2, 2 * MB)
    srd(a, 16, 40, 0, 512 * 1792 * 2)
    srd(a, 20, 8, WS_F, 2048 * 1792 * 2)
    a(f"s_mul_i32 s24, s46, {128*512*2}")
    a("s_lshl_b32 s25, s47, 8")
    a(f"s_mul_i32 s26, s46, {128*1792*2}")
    a("s_add_u32 s26, s26, s25")
    s_ = [a("s_mov_b32 s28, 0"), a("s_mov_b32 s29, 0")]
    top, lds = gemm2_body(a, name, 8, 512, 1792, epi_store(1792, relu=True))
    a.label(f".L{name}_end")
    a("s_endpgm")
    kernels.append((name, (224, 1, 1), (256, 1, 1), lds, top + 16, 56))


def k_resid_gemm(a, name, a_off, a_size, K, w_slot, w_size, res_is_ws, res_off, out_is_ws, out_off, gate_idx):
    begin(a, name)
    a("s_cmp_ge_u32 s2, 256")
    a(f"s_cbranch_scc1 .L{name}_end")
    a(f"s_load_dwordx2 s[40:41], s[0:1], {w_slot}")
    a(f"s_load_dwordx2 s[42:43], s[0:1], {KA_X}")
    a(f"s_load_dwordx2 s[44:45], s[0:1], {KA_OUT}")
    a(f"s_load_dwordx2 s[8:9], s[0:1], {KA_WS}")
    a("s_waitcnt lgkmcnt(0)")
    a("s_and_b32 s46, s2, 31")
    a("s_lshr_b32 s47, s2, 5")
    srd(a, 12, 8, a_off, a_size)
    srd(a, 16, 40, 0, w_size)
    if out_is_ws:
        srd(a, 20, 8, out_off, 2 * MB)
    else:
        srd(a, 20, 44, 0, 2 * MB)
    if res_is_ws:
        srd(a, 32, 8, res_off, 2 * MB)
    else:
        srd(a, 32, 42, 0, 2 * MB)
    srd(a, 36, 8, WS_MOD, 3072 * 4)
    a(f"s_mul_i32 s24, s46, {64*K*2}")
    a("s_lshl_b32 s25, s47, 7")
    a(f"s_mul_i32 s26, s46, {64*512*2}")
    a("s_add_u32 s26, s26, s25")
    a("s_lshl_b32 s27, s47, 6")
    top, lds = gemm_body(a, name, K, K, 512, 512, 64, 64, epi_resid(gate_idx))
    a.label(f".L{name}_end")
    a("s_endpgm")
    kernels.append((name, (256, 1, 1), (256, 1, 1), lds, top + 16, 56))


def k_attn(a):
    name = "attn_kernel"
    begin(a, name)
    a("s_cmp_ge_u32 s2, 256")
    a(f"s_cbranch_scc1 .L{name}_end")
    a(f"s_load_dwordx2 s[8:9], s[0:1], {KA_WS}")
    a("s_waitcnt lgkmcnt(0)")
    srd(a, 12, 8, WS_Q, 16 * MB)
    srd(a, 16, 8, WS_K, 16 * MB)
    srd(a, 20, 8, WS_V, 16 * MB)
    srd(a, 24, 8, WS_CTX, 16 * MB)
    a("s_and_b32 s28, s2, 31")
    a("s_lshr_b32 s44, s2, 5")
    a("s_sub_u32 s29, 15, s44")
    a("s_mov_b32 s45, 0")
    a("s_lshl_b32 s32, s28, 8")
    a("s_lshl_b32 s31, s28, 19")
    QF, OA, SA, PP, KF, VF, KA, VA, M0 = 16, 48, 112, 144, 160, 176, 192, 200, 204
    VM, VL, VT0, VT1, VDIFF, VMN, VAL, VTHR, VMC, VMG = [M0 + i for i in range(10)]
    STG = 32768
    a("v_and_b32 v1, 63, v0")
    a("v_lshrrev_b32 v2, 6, v0")
    a("v_readfirstlane_b32 s38, v2")
    a("s_lshr_b32 s43, s38, 2")
    a("s_and_b32 s38, s38, 3")
    a("v_and_b32 v2, 3, v2")
    a("v_and_b32 v3, 31, v1")
    a("v_lshrrev_b32 v4, 5, v1")
    a("v_lshrrev_b32 v7, 4, v1")
    a("v_lshlrev_b32 v8, 2, v2")
    a("v_add_u32 v8, v8, v7")
    a("v_and_b32 v10, 15, v1")
    a("v_and_b32 v11, 15, v8")
    a("v_xor_b32 v11, v11, v10")
    a("v_lshlrev_b32 v9, 8, v8")
    a("v_add_u32 v9, s31, v9")
    a("v_lshlrev_b32 v11, 4, v11")
    a("v_add_u32 v11, v9, v11")
    a("v_lshrrev_b32 v12, 2, v10")
    a("v_xor_b32 v12, v12, v7")
    a("v_lshlrev_b32 v12, 2, v12")
    a("v_and_b32 v13, 3, v10")
    a("v_add_u32 v12, v12, v13")
    a("v_lshlrev_b32 v12, 4, v12")
    a("v_add_u32 v12, v9, v12")
    a("s_lshl_b32 s46, s43, 16")
    a("v_and_b32 v13, 15, v3")
    a("v_xor_b32 v13, v13, v4")
    a("v_lshlrev_b32 v13, 4, v13")
    a("v_lshlrev_b32 v14, 8, v3")
    a("v_add_u32 v13, v13, v14")
    a("v_add_u32 v13, s46, v13")
    for s in range(8):
        a(f"v_xor_b32 v{KA+s}, {32*s}, v13")
    a("v_lshrrev_b32 v13, 2, v10")
    a("v_lshlrev_b32 v14, 2, v4")
    a("v_add_u32 v14, v14, v13")
    a("v_lshlrev_b32 v14, 8, v14")
    a("v_and_b32 v15, 1, v7")
    a("v_lshlrev_b32 v15, 5, v15")
    a("v_add_u32 v14, v14, v15")
    a("v_and_b32 v15, 3, v10")
    a("v_lshlrev_b32 v15, 3, v15")
    a("v_add_u32 v14, v14, v15")
    a("v_add_u32 v14, 16384, v14")
    a("v_add_u32 v14, s46, v14")
    for dt in range(4):
        a(f"v_xor_b32 v15, {dt}, v13")
        a("v_lshlrev_b32 v15, 6, v15")
        a(f"v_add_u32 v{VA+dt}, v14, v15")
    a("s_lshl_b32 s41, s38, 10")
    a("s_add_u32 s41, s41, s46")
    a("s_mov_b32 s39, 0x3e0293ee")
    a("s_mov_b32 s42, 0x427af232")
    a("v_mul_u32_u24 v15, 9216, v2")
    a("v_lshlrev_b32 v14, 4, v1")
    a(f"v_add_u32 v{VMG}, v15, v14")

    def dma_all(b0, bk1, bv1, first=False):
        for t in range(4):
            a(f"s_add_u32 m0, s41, {b0*STG + t*4096}")
            a(f"s_add_u32 s40, s36, {t*16*256}")
            a("buffer_load_dwordx4 v11, s[16:19], s40 offen lds")
            a(f"s_add_u32 m0, s41, {b0*STG + 16384 + t*4096}")
            a("buffer_load_dwordx4 v12, s[20:23], s40 offen lds")
            a(f"s_add_u32 m0, s41, {65536 + bk1*STG + t*4096}")
            a(f"s_add_u32 s40, s36, {t*16*256 + 16384}")
            a("buffer_load_dwordx4 v11, s[16:19], s40 offen lds")
            if not first:
                a(f"s_add_u32 m0, s41, {65536 + bv1*STG + 16384 + t*4096}")
                a(f"s_add_u32 s40, s36, {t*16*256 - 16384}")
                a("buffer_load_dwordx4 v12, s[20:23], s40 offen lds")
        a(f"s_add_u32 s36, s36, {128*256}")

    if os.environ.get("ATS"):
        a("s_memtime s[60:61]")
        a("s_waitcnt lgkmcnt(0)")
        for i in range(8):
            a(f"s_mov_b32 s{62+i}, 0")
    a.label(f".L{name}_qblock")
    a("s_lshl_b32 s33, s29, 7")
    a("s_add_u32 s34, s29, 1")
    a("s_mov_b32 s47, 0")
    a("s_mov_b32 s35, s43")
    a("s_mov_b32 s36, 0")
    a("s_lshl_b32 s48, s38, 5")
    a("s_add_u32 s48, s48, s33")
    a("s_add_u32 s37, s48, 31")
    a("s_lshr_b32 s37, s37, 6")
    a("s_cmp_eq_u32 s43, 0")
    a(f"s_cbranch_scc0 .L{name}_nov0")
    dma_all(0, 0, 0, first=True)
    a.label(f".L{name}_nov0")
    a("v_lshlrev_b32 v5, 5, v2")
    a("v_add_u32 v5, v5, v3")
    a("v_add_u32 v5, s33, v5")
    a("v_lshlrev_b32 v6, 8, v5")
    a("v_lshlrev_b32 v7, 4, v4")
    a("v_add_u32 v6, v6, v7")
    a("v_add_u32 v6, s31, v6")
    for s in range(8):
        a(f"buffer_load_dwordx4 v[{QF+4*s}:{QF+4*s+3}], v6, s[12:15], 0 offen offset:{32*s}")
    for i in range(64):
        a(f"v_mov_b32 v{OA+i}, 0")
    a(f"v_mov_b32 v{VM}, 0xff800000")
    a(f"v_mov_b32 v{VTHR}, 0xff800000")
    a(f"v_mov_b32 v{VMC}, 0")
    a(f"v_mov_b32 v{VL}, 0")

    TS = bool(os.environ.get("ATS"))
    def ts(seg):
        if not TS:
            return
        a.flush()
        a("s_memtime s[58:59]")
        a("s_waitcnt lgkmcnt(0)")
        a("s_sub_u32 s57, s58, s60")
        a(f"s_add_u32 s{62+seg}, s{62+seg}, s57")
        a("s_mov_b32 s60, s58")

    def qk(bufoff):
        ts(0)
        qk_(bufoff)
        ts(1)

    def qk_(bufoff):
        seq = [(st, s) for st in range(2) for s in range(8)]
        def kread(idx):
            st, s = seq[idx]
            r = KF + (idx & 7) * 4
            a(f"ds_read_b128 v[{r}:{r+3}], v{KA+s} offset:{bufoff + st*8192}")
        for idx in range(7):
            kread(idx)
        for idx, (st, s) in enumerate(seq):
            if idx + 7 < 16:
                kread(idx + 7)
                a("s_waitcnt lgkmcnt(7)")
            else:
                a(f"s_waitcnt lgkmcnt({15-idx})")
            r = KF + (idx & 7) * 4
            c = SA + 16 * st
            src = f"v[{c}:{c+15}]" if s else "0"
            a(f"v_mfma_f32_32x32x16_bf16 v[{c}:{c+15}], v[{r}:{r+3}], v[{QF+4*s}:{QF+4*s+3}], {src}")

    def smpv(bufoff, tag, stile):
        ts(0)
        seq2 = [(ks, dt) for ks in range(4) for dt in range(4)]
        def vread(idx):
            ks, dt = seq2[idx]
            r = KF + (idx & 7) * 4
            for q in range(2):
                a(f"ds_read_b64_tr_b16 v[{r+2*q}:{r+2*q+1}], v{VA+dt} offset:{bufoff + (16*ks+8*q)*256}")
        for idx in range(7):
            vread(idx)
        a("s_lshl_b32 s40, s29, 1")
        a(f"s_cmp_lt_u32 {stile}, s40")
        a(f"s_cbranch_scc1 .L{name}_nomask{tag}")
        a(f"s_lshl_b32 s40, {stile}, 6")
        a(f"v_lshlrev_b32 v{VT0}, 2, v4")
        a(f"v_add_u32 v{VT0}, s40, v{VT0}")
        a(f"v_sub_u32 v{VDIFF}, v5, v{VT0}")
        a(f"v_mov_b32 v{VT1}, 0xff800000")
        for st in range(2):
            for i in range(16):
                cst = 32 * st + 8 * (i // 4) + i % 4
                a(f"v_cmp_gt_i32 vcc, {cst}, v{VDIFF}")
                a(f"v_cndmask_b32 v{SA+16*st+i}, v{SA+16*st+i}, v{VT1}, vcc")
        a.label(f".L{name}_nomask{tag}")
        a(f"v_max3_f32 v{VT0}, v{SA}, v{SA+1}, v{SA+2}")
        a(f"v_max3_f32 v{VT1}, v{SA+3}, v{SA+4}, v{SA+5}")
        for i in range(6, 30, 4):
            a(f"v_max3_f32 v{VT0}, v{VT0}, v{SA+i}, v{SA+i+1}")
            a(f"v_max3_f32 v{VT1}, v{VT1}, v{SA+i+2}, v{SA+i+3}")
        a(f"v_max3_f32 v{VT0}, v{VT0}, v{SA+30}, v{SA+31}")
        a(f"v_max_f32 v{VT0}, v{VT0}, v{VT1}")
        a(f"v_mov_b32 v{VT1}, v{VT0}")
        a(f"v_permlane32_swap_b32 v{VT0}, v{VT1}")
        a(f"v_max_f32 v{VT0}, v{VT0}, v{VT1}")
        a(f"v_cmp_gt_f32 vcc, v{VT0}, v{VTHR}")
        a(f"s_cbranch_vccz .L{name}_noresc{tag}")
        a(f"v_max_f32 v{VMN}, v{VT0}, v{VM}")
        a(f"v_sub_f32 v{VAL}, v{VM}, v{VMN}")
        a(f"v_mul_f32 v{VAL}, s39, v{VAL}")
        a(f"v_exp_f32 v{VAL}, v{VAL}")
        a(f"v_mov_b32 v{VM}, v{VMN}")
        a(f"v_add_f32 v{VTHR}, s42, v{VMN}")
        a(f"v_mul_f32 v{VMC}, s39, v{VMN}")
        a(f"v_mul_f32 v{VL}, v{VL}, v{VAL}")
        for i in range(64):
            a(f"v_mul_f32 v{OA+i}, v{OA+i}, v{VAL}")
        a.label(f".L{name}_noresc{tag}")
        for i in range(32):
            a(f"v_fma_f32 v{SA+i}, v{SA+i}, s39, -v{VMC}")
        for i in range(32):
            a(f"v_exp_f32 v{SA+i}, v{SA+i}")
        for i in range(16):
            a(f"v_cvt_pk_bf16_f32 v{PP+i}, v{SA+2*i}, v{SA+2*i+1}")
        if TS:
            ts(2)
            for idx in range(3):
                vread(idx)
        for idx, (ks, dt) in enumerate(seq2):
            if idx + 7 < 16:
                vread(idx + 7)
                a("s_waitcnt lgkmcnt(14)")
            else:
                a(f"s_waitcnt lgkmcnt({2*(15-idx)})")
            r = KF + (idx & 7) * 4
            c = OA + 16 * dt
            a(f"v_mfma_f32_32x32x16_bf16 v[{c}:{c+15}], v[{r}:{r+3}], v[{PP+4*ks}:{PP+4*ks+3}], v[{c}:{c+15}]")
            a(f"v_add_f32 v{VL}, v{VL}, v{SA+2*idx}")
            a(f"v_add_f32 v{VL}, v{VL}, v{SA+2*idx+1}")
        ts(3)

    a("s_cmp_eq_u32 s43, 0")
    a(f"s_cbranch_scc0 .L{name}_g1loop")
    a.label(f".L{name}_loop")
    for b in range(2):
        ts(0)
        a("s_waitcnt vmcnt(0)")
        ts(4)
        a("s_barrier")
        ts(5)
        dma_all(b ^ 1, b ^ 1, b)
        ts(6)
        a("s_cmp_gt_u32 s35, s37")
        a(f"s_cbranch_scc1 .L{name}_skip{b}")
        qk(b * STG)
        smpv(b * STG, f"a{b}", "s35")
        a.label(f".L{name}_skip{b}")
        a("s_add_u32 s35, s35, 2")
        a("s_add_u32 s47, s47, 1")
        a("s_cmp_lt_u32 s47, s34")
        if b == 0:
            a(f"s_cbranch_scc0 .L{name}_done0")
        else:
            a(f"s_cbranch_scc1 .L{name}_loop")
    a.label(f".L{name}_done0")
    a("s_waitcnt vmcnt(0)")
    a("s_barrier")
    a(f"s_branch .L{name}_done")
    a.label(f".L{name}_g1loop")
    for b in range(2):
        ts(0)
        a("s_waitcnt vmcnt(0)")
        ts(4)
        a("s_barrier")
        ts(5)
        ts(6)
        a("s_sub_u32 s50, s35, 2")
        a("s_cmp_eq_u32 s47, 0")
        a(f"s_cbranch_scc1 .L{name}_g1s{b}")
        a("s_cmp_gt_u32 s50, s37")
        a(f"s_cbranch_scc1 .L{name}_g1s{b}")
        smpv((b ^ 1) * STG, f"b{b}", "s50")
        a.label(f".L{name}_g1s{b}")
        a("s_cmp_gt_u32 s35, s37")
        a(f"s_cbranch_scc1 .L{name}_g1q{b}")
        qk(b * STG)
        a.label(f".L{name}_g1q{b}")
        a("s_add_u32 s35, s35, 2")
        a("s_add_u32 s47, s47, 1")
        a("s_cmp_lt_u32 s47, s34")
        if b == 0:
            a(f"s_cbranch_scc0 .L{name}_g1t0")
        else:
            a(f"s_cbranch_scc1 .L{name}_g1loop")
    for b in (1, 0):
        a.label(f".L{name}_g1t{b}")
        a("s_waitcnt vmcnt(0)")
        a("s_barrier")
        a("s_sub_u32 s50, s35, 2")
        a("s_cmp_gt_u32 s50, s37")
        a(f"s_cbranch_scc1 .L{name}_done")
        smpv(b * STG, f"t{b}", "s50")
        a(f"s_branch .L{name}_done")
    a.label(f".L{name}_done")
    a("s_waitcnt vmcnt(0)")
    a("s_barrier")
    a("s_mul_i32 s40, s43, 36864")
    a(f"v_add_u32 v6, s40, v{VMG}")
    a("s_sub_u32 s40, 36864, s40")
    a(f"v_add_u32 v7, s40, v{VMG}")
    a("s_cmp_eq_u32 s43, 0")
    a(f"s_cbranch_scc0 .L{name}_w1")
    for r4 in range(8):
        a(f"ds_write_b128 v6, v[{OA+32+4*r4}:{OA+32+4*r4+3}] offset:{r4*1024}")
    a(f"s_branch .L{name}_w2")
    a.label(f".L{name}_w1")
    for r4 in range(8):
        a(f"ds_write_b128 v6, v[{OA+4*r4}:{OA+4*r4+3}] offset:{r4*1024}")
    for i in range(32):
        a(f"v_mov_b32 v{OA+i}, v{OA+32+i}")
    a.label(f".L{name}_w2")
    a(f"ds_write_b64 v6, v[{VM}:{VL}] offset:{8*1024}")
    a("s_waitcnt lgkmcnt(0)")
    a("s_barrier")
    a(f"ds_read_b64 v[{VT0}:{VT1}], v7 offset:{8*1024}")
    for r4 in range(8):
        a(f"ds_read_b128 v[{SA+4*r4}:{SA+4*r4+3}], v7 offset:{r4*1024}")
    a("s_waitcnt lgkmcnt(8)")
    a(f"v_max_f32 v{VMN}, v{VM}, v{VT0}")
    a(f"v_sub_f32 v{VAL}, v{VM}, v{VMN}")
    a(f"v_mul_f32 v{VAL}, s39, v{VAL}")
    a(f"v_exp_f32 v{VAL}, v{VAL}")
    a(f"v_sub_f32 v{VT0}, v{VT0}, v{VMN}")
    a(f"v_mul_f32 v{VT0}, s39, v{VT0}")
    a(f"v_exp_f32 v{VT0}, v{VT0}")
    a(f"v_mul_f32 v{VL}, v{VL}, v{VAL}")
    a(f"v_fmac_f32 v{VL}, v{VT1}, v{VT0}")
    a(f"v_mov_b32 v{VT1}, v{VL}")
    a(f"v_permlane32_swap_b32 v{VL}, v{VT1}")
    a(f"v_add_f32 v{VL}, v{VL}, v{VT1}")
    a(f"v_rcp_f32 v{VL}, v{VL}")
    a(f"v_mul_f32 v{VAL}, v{VAL}, v{VL}")
    a(f"v_mul_f32 v{VT0}, v{VT0}, v{VL}")
    a("v_lshlrev_b32 v6, 13, v5")
    a("v_lshlrev_b32 v7, 4, v4")
    a("v_add_u32 v6, v6, v7")
    a("v_add_u32 v6, s32, v6")
    a("s_lshl_b32 s40, s43, 7")
    a("v_add_u32 v6, s40, v6")
    a("s_waitcnt lgkmcnt(0)")
    for p in range(4):
        for half in range(2):
            r = OA + 8 * p + 4 * half
            for q in range(4):
                a(f"v_mul_f32 v{r+q}, v{r+q}, v{VAL}")
                a(f"v_fmac_f32 v{r+q}, v{SA+8*p+4*half+q}, v{VT0}")
        r = OA + 8 * p
        a(f"v_cvt_pk_bf16_f32 v{r}, v{r}, v{r+1}")
        a(f"v_cvt_pk_bf16_f32 v{r+1}, v{r+2}, v{r+3}")
        a(f"v_cvt_pk_bf16_f32 v{r+2}, v{r+4}, v{r+5}")
        a(f"v_cvt_pk_bf16_f32 v{r+3}, v{r+6}, v{r+7}")
        a(f"v_permlane32_swap_b32 v{r}, v{r+2}")
        a(f"v_permlane32_swap_b32 v{r+1}, v{r+3}")
        a(f"buffer_store_dwordx4 v[{r}:{r+3}], v6, s[24:27], 0 offen offset:{32*p}")
    a.label(f".L{name}_m1")
    a("s_barrier")
    ts(7)
    a("s_cmp_eq_u32 s45, 1")
    a(f"s_cbranch_scc1 .L{name}_end2")
    a("s_mov_b32 s45, 1")
    a("s_mov_b32 s29, s44")
    a(f"s_branch .L{name}_qblock")
    a.label(f".L{name}_end2")
    if os.environ.get("ATS"):
        ts(0)
        srd(a, 72, 8, 90 * MB, 4 * MB)
        a("s_lshl_b32 s76, s2, 3")
        a("s_add_u32 s76, s76, s43")
        a("s_lshl_b32 s76, s43, 2")
        a("s_lshl_b32 s77, s2, 3")
        a("s_add_u32 s76, s76, s77")
        a("s_add_u32 s76, s76, s38")
        a("s_lshl_b32 s76, s76, 5")
        for i in range(8):
            a(f"v_mov_b32 v{16+i}, s{62+i}")
        a("v_mov_b32 v24, s76")
        a("buffer_store_dwordx4 v[16:19], v24, s[72:75], 0 offen")
        a("buffer_store_dwordx4 v[20:23], v24, s[72:75], 0 offen offset:16")
    a.label(f".L{name}_end")
    a("s_endpgm")
    kernels.append((name, (256, 1, 1), (512, 1, 1), 4 * STG, 216, 96))


def main():
    a = Asm()
    k_mod(a)
    k_ln(a, "ln1_kernel", False, 0, WS_H, 0, 1)
    k_qkv(a)
    k_attn(a)
    k_oproj_sk(a)
    k_ln(a, "ln2_kernel", True, WS_X1, WS_H2, 3, 4, reduce_gate=2)
    k_ffn1(a)
    k_resid_gemm(a, "ffn2_kernel", WS_F, 2048 * 1792 * 2, 1792, KA_W2, 1792 * 512 * 2, True, WS_X1, False, 0, 5)
    hdr = []
    ref = open(f"cdna_kernels/{NAME}.s.ref").read().split("\n")
    for l in ref:
        if l.startswith("; @launch") or l.startswith("; Override") or l.startswith("; grid="):
            continue
        if l.startswith(";"):
            hdr.append(l)
        else:
            break
    for (n, g, b, lds, v, s) in kernels:
        hdr.append(f"; @launch kernel={n} grid=({g[0]},{g[1]},{g[2]}) block=({b[0]},{b[1]},{b[2]}) lds={lds}")
    txt = "\n".join(hdr) + "\n"
    txt += '.amdgcn_target "amdgcn-amd-amdhsa--gfx950"\n.text\n'
    txt += a.text()
    txt += '.section .rodata,"a"\n'
    seen = set()
    for (n, g, b, lds, v, s) in kernels:
        if n in seen:
            continue
        seen.add(n)
        v4 = (v + 3) // 4 * 4
        txt += f""".p2align 6
.amdhsa_kernel {n}
  .amdhsa_next_free_vgpr {v4}
  .amdhsa_next_free_sgpr {s}
  .amdhsa_accum_offset {v4}
  .amdhsa_group_segment_fixed_size 0
  .amdhsa_kernarg_size 112
  .amdhsa_user_sgpr_count 2
  .amdhsa_user_sgpr_kernarg_segment_ptr 1
  .amdhsa_system_sgpr_workgroup_id_x 1
.end_amdhsa_kernel
"""
    open(os.environ.get("OUT", f"cdna_kernels/{NAME}.s"), "w").write(txt)
    print("written", len(txt), "bytes")


main()
```
